```python
import torch

def _softmax(x, axis=-1):
    return torch.softmax(x, dim=axis)

def _gelu(x):
    return torch.nn.functional.gelu(x, approximate='tanh')

def _silu(x):
    return torch.nn.functional.silu(x)

def _sigmoid(x):
    return torch.sigmoid(x)

def _layernorm(x, axis=-1, eps=1e-05):
    m = x.mean(dim=axis, keepdim=True)
    v = x.var(dim=axis, keepdim=True, unbiased=False)
    return (x - m) / torch.sqrt(v + eps)

def _scatter_add(tgt, idx, src, axis=0):
    return tgt.clone().index_add_(axis, idx, src)

def _segment_sum(src, seg, n):
    out = torch.zeros((n,) + src.shape[1:], dtype=src.dtype)
    return out.index_add_(0, seg, src)

def _pad(x, pw):
    flat = tuple((v for pair in reversed(pw) for v in pair))
    return torch.nn.functional.pad(x, flat)
kernel_name = 'gated_mix__memory_aug_recurrent_mem_tr__spectral_gfnet__prompt'

def setup_inputs():

    _w = lambda a: (lambda t: t.to(torch.bfloat16) if t.is_floating_point() else t)(torch.as_tensor(a))

    def _A_setup():
        B, S, Dm = (1, 2048, 1024)
        H, Dh = (32, 128)
        M, seg = (8, 32)
        seg = min(seg, S)
        S = S // seg * seg
        return {'x': _w((lambda *s: torch.randn(*s, dtype=torch.bfloat16) * 0.05)(B, S, Dm)), 'mem0': _w((lambda *s: torch.randn(*s, dtype=torch.bfloat16) * 0.4)(B, M, Dm)), 'Wq': _w((lambda *s: torch.randn(*s, dtype=torch.bfloat16) * 6.4)(Dm, H, Dh) * Dm ** (-0.5)), 'Wk': _w((lambda *s: torch.randn(*s, dtype=torch.bfloat16) * 6.4)(Dm, H, Dh) * Dm ** (-0.5)), 'Wv': _w((lambda *s: torch.randn(*s, dtype=torch.bfloat16) * 0.4)(Dm, H, Dh) * Dm ** (-0.5)), 'Wo': _w((lambda *s: torch.randn(*s, dtype=torch.bfloat16) * 0.4)(H, Dh, Dm) * (H * Dh) ** (-0.5)), 'seg_len': seg}
    _A_in = _A_setup()

    def _B_setup():
        B, S, D = (1, 2048, 1024)
        Df = D // 2 + 1
        return {'x': _w((lambda *s: torch.randn(*s, dtype=torch.bfloat16) * 0.05)(B, S, D)), 'w_r': _w((lambda *s: torch.randn(*s, dtype=torch.bfloat16) * 3.2)(S, Df) * 0.02), 'w_i': _w((lambda *s: torch.randn(*s, dtype=torch.bfloat16) * 3.2)(S, Df) * 0.02)}
    _B_in = _B_setup()
    return {'A_x': _A_in['x'], 'A_mem0': _A_in['mem0'], 'A_Wq': _A_in['Wq'], 'A_Wk': _A_in['Wk'], 'A_Wv': _A_in['Wv'], 'A_Wo': _A_in['Wo'], 'A_seg_len': _A_in['seg_len'], 'B_x': _B_in['x'], 'B_w_r': _B_in['w_r'], 'B_w_i': _B_in['w_i'], 'gate_w': _w((lambda *s: torch.randn(*s, dtype=torch.bfloat16) * 0.05)(1024) * 16.0)}

def reference(A_x, A_mem0, A_Wq, A_Wk, A_Wv, A_Wo, A_seg_len, B_x, B_w_r, B_w_i, gate_w):

    def _A_ref(x, mem0, Wq, Wk, Wv, Wo, seg_len):
        B, S, Dm = x.shape
        H, Dh = (Wq.shape[1], Wq.shape[2])
        M = mem0.shape[1]
        scale = Dh ** (-0.5)
        n_seg = S // seg_len
        L = M + seg_len
        idx = torch.arange(L)
        mask = (idx[:, None] < M) | (idx[:, None] >= idx[None, :])
        mem = mem0
        outs = []
        for s in range(n_seg):
            xs = x[:, s * seg_len:(s + 1) * seg_len, :].clone()
            h = torch.concatenate([mem, xs], axis=1)
            q = torch.einsum('btd,dhe->bhte', h, Wq)
            k = torch.einsum('btd,dhe->bhte', h, Wk)
            v = torch.einsum('btd,dhe->bhte', h, Wv)
            scores = torch.einsum('bhqe,bhke->bhqk', q, k) * scale
            scores = torch.where(mask[None, None], scores, -1000000000.0)
            p = _softmax(scores, axis=-1)
            o = torch.einsum('bhqk,bhke->bhqe', p, v)
            o = torch.einsum('bhte,hed->btd', o, Wo)
            mem = o[:, :M, :].clone()
            outs.append(o[:, M:, :])
        return torch.concatenate(outs, axis=1)

    def _B_ref(x, w_r, w_i):
        B, S, D = x.shape
        X = (lambda x, axes=(-2, -1): torch.fft.rfft2(x.float(), dim=axes))(x, axes=(-2, -1))
        W = w_r + 1j * w_i
        X = X * W
        y = (lambda x, s, axes=(-2, -1): torch.fft.irfft2(x, s=s, dim=axes).to(torch.bfloat16))(X, (S, D), axes=(-2, -1))
        return y
    x = A_x
    g = _sigmoid((x * gate_w).sum(-1, keepdims=True))
    a = _A_ref(x, A_mem0, A_Wq, A_Wk, A_Wv, A_Wo, A_seg_len)
    b = _B_ref(x, B_w_r, B_w_i)
    return g * a + (1 - g) * b
```

```python
class Asm:
    def __init__(self):
        self.lines = []
        self._n = 0
    def __call__(self, s):
        for ln in s.split('\n'):
            ln = ln.strip()
            if ln:
                self.lines.append('    ' + ln if not ln.endswith(':') else ln)
    def c(self, s):
        self.lines.append('    ; ' + s)
    def label(self, name):
        self.lines.append(name + ':')
    def newlabel(self, base='L'):
        self._n += 1
        return f'{base}_{self._n}'
    def text(self):
        return '\n'.join(self.lines) + '\n'

def v(a, n=1):
    return f'v{a}' if n == 1 else f'v[{a}:{a+n-1}]'
def s(a, n=1):
    return f's{a}' if n == 1 else f's[{a}:{a+n-1}]'

class Regs:
    def __init__(self, start=0, limit=256):
        self.p = start; self.limit = limit
    def alloc(self, n=1, align=1):
        if n >= 2 and align < 2: align = 2
        p = (self.p + align - 1) // align * align
        self.p = p + n
        assert self.p <= self.limit, f'out of regs {self.p}'
        return p

def kernel_header(name):
    return f""".globl {name}
.p2align 8
.type {name},@function
{name}:
"""

def kernel_desc(name, vgpr=256, sgpr=102, accum=256):
    return f""".p2align 6
.amdhsa_kernel {name}
  .amdhsa_next_free_vgpr {vgpr}
  .amdhsa_next_free_sgpr {sgpr}
  .amdhsa_accum_offset {accum}
  .amdhsa_group_segment_fixed_size 0
  .amdhsa_kernarg_size 112
  .amdhsa_user_sgpr_count 2
  .amdhsa_user_sgpr_kernarg_segment_ptr 1
  .amdhsa_system_sgpr_workgroup_id_x 1
  .amdhsa_float_denorm_mode_32 3
  .amdhsa_float_denorm_mode_16_64 3
.end_amdhsa_kernel
"""
```

```python
from asmlib import *

class G:
    XS = 60; WSR = 64
    sXo, sWo, sCnt, sM0, sA, sB, sWX, sWW = 68, 69, 70, 71, 72, 73, 74, 75
    sWv = 76
    vL = 0
    vXD, vWD = 1, 2
    vXR = 4
    vWR = 8
    vT = 12
    FR = 24
    ACC = 128

def gemm_setup(a, BN, WM, WN, xmode, xstride, wstride, featperm, wrow=None):
    g = G; T = g.vT
    MT, NT = 256 // WM // 32, BN // WN // 32
    XB = 32768
    lg = {1: 0, 2: 1, 4: 2, 8: 3}[WN]
    a(f's_lshr_b32 s{g.sA}, s{g.sWv}, {lg}\ns_and_b32 s{g.sB}, s{g.sWv}, {WN-1}')
    if xmode == 'row':
        a(f'''v_lshrrev_b32 v{T}, 3, v0
        s_lshl_b32 s{g.sM0}, s{g.sWv}, 3
        v_add_u32 v{T}, s{g.sM0}, v{T}
        v_lshrrev_b32 v{T+1}, 1, v{T}
        v_xor_b32 v{T+1}, v{T+1}, v0
        v_and_b32 v{T+1}, 7, v{T+1}
        s_mov_b32 s{g.sM0}, {xstride}
        v_mul_lo_u32 v{g.vXD}, v{T}, s{g.sM0}
        v_lshl_add_u32 v{g.vXD}, v{T+1}, 4, v{g.vXD}''')
        a(f'''v_and_b32 v{T}, 31, v0
        v_lshrrev_b32 v{T+1}, 1, v{T}
        v_lshrrev_b32 v{T+2}, 5, v0
        v_xor_b32 v{T+1}, v{T+1}, v{T+2}
        v_and_b32 v{T+1}, 7, v{T+1}
        v_lshlrev_b32 v{T+1}, 4, v{T+1}
        v_lshl_add_u32 v{T}, v{T}, 7, v{T+1}
        s_mul_i32 s{g.sM0}, s{g.sA}, {MT*4096}
        v_add_u32 v{g.vXR}, s{g.sM0}, v{T}''')
        for ks in range(1, 4): a(f'v_xor_b32 v{g.vXR+ks}, {ks << 5}, v{g.vXR}')
    else:
        a(f'''s_lshr_b32 s{g.sM0}, s{g.sWv}, 2
        s_mul_i32 s{g.sM0}, s{g.sM0}, {xstride}
        s_and_b32 s{g.sCnt}, s{g.sWv}, 3
        s_lshl_b32 s{g.sCnt}, s{g.sCnt}, 10
        s_add_u32 s{g.sM0}, s{g.sM0}, s{g.sCnt}
        v_lshl_add_u32 v{g.vXD}, v0, 4, s{g.sM0}''')
        a(f'''v_and_b32 v{T}, 31, v0
        v_lshrrev_b32 v{T+2}, 5, v0
        v_lshlrev_b32 v{T+2}, 12, v{T+2}
        v_lshl_add_u32 v{T}, v{T}, 4, v{T+2}
        s_mul_i32 s{g.sM0}, s{g.sA}, {MT*512}
        v_add_u32 v{g.vXR}, s{g.sM0}, v{T}''')
        for ks in range(1, 4): a(f'v_add_u32 v{g.vXR+ks}, {ks << 13}, v{g.vXR}')
    RPI = 512 // BN; lpr = 64 // RPI; lgl = {32: 5, 16: 4}[lpr]
    a(f'''v_lshrrev_b32 v{T}, {lgl}, v0
    s_mul_i32 s{g.sM0}, s{g.sWv}, {RPI}
    v_add_u32 v{T}, s{g.sM0}, v{T}
    v_and_b32 v{T+1}, 3, v{T}
    v_lshlrev_b32 v{T+1}, 2, v{T+1}
    v_and_b32 v{T+2}, {lpr-1}, v0
    v_xor_b32 v{T+1}, v{T+1}, v{T+2}''')
    if wrow: wrow(a, T)
    a(f'''s_mov_b32 s{g.sM0}, {wstride}
    v_mul_lo_u32 v{g.vWD}, v{T}, s{g.sM0}
    v_lshl_add_u32 v{g.vWD}, v{T+1}, 4, v{g.vWD}''')
    a(f'''v_bfe_u32 v{T}, v0, 2, 2
    v_lshrrev_b32 v{T+1}, 5, v0
    v_lshl_add_u32 v{T+1}, v{T+1}, 3, v{T}
    v_mul_u32_u24 v{T+1}, {2*BN}, v{T+1}
    v_add_u32 v{T+1}, {XB}, v{T+1}
    v_lshlrev_b32 v{T}, 6, v{T}
    v_bfe_u32 v{T+2}, v0, 4, 1
    v_lshlrev_b32 v{T+2}, 5, v{T+2}''')
    if featperm:
        a(f'''v_and_b32 v{T+3}, 1, v0
        v_lshl_add_u32 v{T+2}, v{T+3}, 4, v{T+2}
        v_bfe_u32 v{T+3}, v0, 1, 1
        v_lshl_add_u32 v{T+2}, v{T+3}, 3, v{T+2}''')
    else:
        a(f'v_and_b32 v{T+3}, 3, v0\nv_lshl_add_u32 v{T+2}, v{T+3}, 3, v{T+2}')
    a(f's_mul_i32 s{g.sM0}, s{g.sB}, {NT*64}\nv_add_u32 v{T+2}, s{g.sM0}, v{T+2}')
    for nt in range(NT):
        a(f'v_add_u32 v{T+3}, {nt*64}, v{T+2}\nv_xor_b32 v{T+3}, v{T+3}, v{T}\nv_add_u32 v{g.vWR+nt}, v{T+3}, v{T+1}')
    a(f's_lshl_b32 s{g.sWX}, s{g.sWv}, 10\ns_add_u32 s{g.sWW}, s{g.sWX}, {XB}')

def gemm_loop(a, tag, BN, WM, WN, xmode, swap, nstage, x_i, x_stage, w_i, w_stage, zero=True, ldflav='', w_stage2=None):
    g = G
    MT, NT = 256 // WM // 32, BN // WN // 32
    NXI, NWI = 4, BN // 64
    FS = 4 * (MT + NT)
    fx = lambda st, mt: g.FR + st * FS + 4 * mt
    fw = lambda st, nt: g.FR + st * FS + 4 * MT + 4 * nt
    acc = lambda mt, nt: g.ACC + 16 * (mt * NT + nt)
    mstep = 4096 if xmode == 'row' else 512
    def reads(st, ks):
        r = []
        xs = [f'ds_read_b128 {v(fx(st,mt),4)}, v{g.vXR+ks} offset:{mt*mstep}' for mt in range(MT)]
        ws = [f'ds_read_b64_tr_b16 {v(fw(st,nt)+2*rd,2)}, v{g.vWR+nt} offset:{(16*ks+4*rd)*2*BN}' for nt in range(NT) for rd in range(2)]
        r = [xs[0]] + ws + xs[1:]
        return r
    def dmas():
        d = []
        for i in range(NXI):
            d.append(f's_add_u32 m0, s{g.sWX}, {i*8192}\ns_add_u32 s{g.sM0}, s{g.sXo}, {i*x_i}\nbuffer_load_dwordx4 v{g.vXD}, s[{g.XS}:{g.XS+3}], s{g.sM0} offen lds{ldflav}')
        for i in range(NWI):
            d.append(f's_add_u32 m0, s{g.sWW}, {i*8192}\ns_add_u32 s{g.sM0}, s{g.sWo}, {i*w_i}\nbuffer_load_dwordx4 v{g.vWD}, s[{g.WSR}:{g.WSR+3}], s{g.sM0} offen lds{ldflav}')
        return d
    def advance():
        t = f's_add_u32 s{g.sXo}, s{g.sXo}, {x_stage}\n'
        if w_stage2 is None: t += f's_add_u32 s{g.sWo}, s{g.sWo}, {w_stage}\n'
        else: t += f's_bitcmp1_b32 s{g.sWX}, 16\ns_cselect_b32 s{g.sM0}, {w_stage2-w_stage}, 0\ns_add_u32 s{g.sWo}, s{g.sWo}, s{g.sM0}\ns_add_u32 s{g.sWo}, s{g.sWo}, {w_stage}\n'
        t += f's_xor_b32 s{g.sWX}, s{g.sWX}, 0x10000\ns_xor_b32 s{g.sWW}, s{g.sWW}, 0x10000'
        return t
    def mfmas(st):
        m = []
        for mt in range(MT):
            for nt in range(NT):
                d = v(acc(mt, nt), 16); X = v(fx(st, mt), 4); Wf = v(fw(st, nt), 4)
                m.append(f'v_mfma_f32_32x32x16_bf16 {d}, {Wf if swap else X}, {X if swap else Wf}, {d}')
        return m
    def weave(m, fill):
        per = -(-len(fill) // len(m)) if fill else 0
        per = max(per, 2)
        for x in m:
            a(x)
            for _ in range(per):
                if fill: a(fill.pop(0))
        for f in fill: a(f)
    a('s_barrier')
    for d in dmas(): a(d)
    a(advance())
    for d in dmas(): a(d)
    a(advance())
    a(f's_mov_b32 s{g.sCnt}, {nstage}')
    if zero:
        for r in range(16 * MT * NT): a(f'v_mov_b32 v{g.ACC+r}, 0')
    a(f's_waitcnt vmcnt({NXI+NWI})\ns_barrier')
    for r in reads(0, 0): a(r)
    a(f'{tag}_LOOP:')
    for ks in range(3):
        a('s_waitcnt lgkmcnt(0)')
        weave(mfmas(ks & 1), reads((ks + 1) & 1, ks + 1))
    tog = [f'v_xor_b32 v{g.vXR+k}, 0x10000, v{g.vXR+k}' for k in range(4)] + [f'v_xor_b32 v{g.vWR+n}, 0x10000, v{g.vWR+n}' for n in range(NT)]
    for t in tog: a(t)
    a(f's_sub_u32 s{g.sCnt}, s{g.sCnt}, 1')
    a('s_waitcnt vmcnt(0) lgkmcnt(0)\ns_barrier')
    a(f's_cmp_lt_u32 s{g.sCnt}, 2\ns_cbranch_scc1 {tag}_TAIL')
    rd = reads(0, 0); dm = dmas(); fill = []
    while rd or dm:
        if rd: fill.append(rd.pop(0))
        if rd and len(rd) > len(dm): fill.append(rd.pop(0))
        if dm: fill.append(dm.pop(0))
    weave(mfmas(1), fill)
    a(advance())
    a(f's_branch {tag}_LOOP')
    a(f'{tag}_TAIL:')
    weave(mfmas(1), reads(0, 0))
    a(f's_cmp_lg_u32 s{g.sCnt}, 0\ns_cbranch_scc1 {tag}_LOOP')
    a('s_waitcnt lgkmcnt(0)\ns_nop 15')
    return acc
```

```python
from asmlib import *
from layout import *
from gemm import *
from rec import srd, WS

sRB, sCB = 77, 78
sTY = 79
sEO = 80

def gen_gemm1(a, tag, BN, done, stflav='', ldflav=''):
    g = G; T = g.vT; W = f's[{WS}:{WS+3}]'
    WM, WN = (2, 4) if BN == 256 else (4, 2)
    MT, NT = 256 // WM // 32, BN // WN // 32
    a(f's_load_dwordx2 s[4:5], s[0:1], 0')
    a(f'''s_cmp_eq_u32 s{sTY}, 0
    s_cselect_b32 s{g.sM0}, 24, 32
    s_cmp_eq_u32 s{sTY}, 2
    s_cselect_b32 s{g.sM0}, 16, s{g.sM0}
    s_cmp_eq_u32 s{sTY}, 3
    s_cselect_b32 s{g.sM0}, 104, s{g.sM0}
    s_load_dwordx2 s[6:7], s[0:1], s{g.sM0}
    s_lshl_b32 s{g.sXo}, s{sRB}, 19
    s_mul_i32 s{g.sWo}, s{sCB}, {2*BN}
    s_waitcnt lgkmcnt(0)''')
    srd(a, g.XS, 4, 4*MB)
    srd(a, g.WSR, 6, 8*MB)
    a(f's_cmp_eq_u32 s{sTY}, 3\ns_cbranch_scc1 {tag}_F')
    a(f's_cmp_eq_u32 s{sTY}, 1\ns_cbranch_scc1 {tag}_V')
    RPI = 512 // BN
    gemm_setup(a, BN, WM, WN, 'row', 2048, 8192, True)
    acc = gemm_loop(a, tag+'_KQ', BN, WM, WN, 'row', True, 16, 64*2048, 128, 8*RPI*8192, 64*8192, ldflav=ldflav)
    def blockbase(shift_reg_or_imm, base):
        a(f'''s_lshl_b32 s{sEO}, s{sRB}, 3
        s_mul_i32 s{g.sM0}, s{g.sA}, {MT}
        s_add_u32 s{sEO}, s{sEO}, s{g.sM0}
        s_lshl_b32 s{sEO}, s{sEO}, 5
        s_mul_i32 s{g.sM0}, s{sCB}, {BN//128}
        s_add_u32 s{sEO}, s{sEO}, s{g.sM0}
        s_lshr_b32 s{g.sM0}, s{g.sB}, 1
        s_add_u32 s{sEO}, s{sEO}, s{g.sM0}
        s_lshl_b32 s{sEO}, s{sEO}, {shift_reg_or_imm}
        s_add_u32 s{sEO}, s{sEO}, {base}''')
    a(f'''s_cmp_eq_u32 s{sTY}, 0
    s_cselect_b32 s{g.sCnt}, 14, 13
    s_mov_b32 s{g.sXo}, {Q_BASE}
    s_cselect_b32 s{g.sXo}, {KV_BASE}, s{g.sXo}''')
    blockbase(f's{g.sCnt}', f's{g.sXo}')
    a(f's_lshl_b32 s{g.sCnt}, 32, s{g.sCnt}')
    a(f'''v_and_b32 v{T}, 3, v0
    v_lshlrev_b32 v{T}, 4, v{T}
    v_bfe_u32 v{T+1}, v0, 4, 1
    v_lshl_add_u32 v{T}, v{T+1}, 6, v{T}
    v_bfe_u32 v{T+1}, v0, 2, 1
    v_lshl_add_u32 v{T}, v{T+1}, 7, v{T}
    v_bfe_u32 v{T+1}, v0, 5, 1
    v_lshl_add_u32 v{T}, v{T+1}, 8, v{T}
    v_bfe_u32 v{T+1}, v0, 3, 1
    v_lshl_add_u32 v{T}, v{T+1}, 12, v{T}
    s_and_b32 s{g.sM0}, s{g.sB}, 1
    s_lshl_b32 s{g.sM0}, s{g.sM0}, 11
    v_add_u32 v{T}, s{g.sM0}, v{T}''')
    P = g.FR
    n = 0
    for mt in range(MT):
        for nt in range(NT):
            for h in range(2):
                p = P + 4 * (n % 8); n += 1
                for j in range(4): a(f'v_cvt_pk_bf16_f32 v{p+j}, v{acc(mt,nt)+8*h+2*j}, v{acc(mt,nt)+8*h+2*j+1}')
                a(f'buffer_store_dwordx4 {v(p,4)}, v{T}, {W}, s{sEO} offen offset:{nt*1024+h*512}{stflav}')
        a(f's_add_u32 s{sEO}, s{sEO}, s{g.sCnt}')
    a(f's_branch {done}')
    a(f'{tag}_V:')
    gemm_setup(a, BN, WM, WN, 'row', 2048, 8192, False)
    a(f's_mov_b32 s{sEO}, {8*RPI*8192}\ns_mov_b32 s{sEO+1}, {64*8192}\ns_branch {tag}_VF')
    a(f'{tag}_F:')
    a(f's_mov_b32 s{g.WSR+2}, {WS_SIZE}\ns_add_u32 s{g.sWo}, s{g.sWo}, {FD_BASE}')
    gemm_setup(a, BN, WM, WN, 'row', 2048, 2048, False)
    a(f's_mov_b32 s{sEO}, {8*RPI*2048}\ns_mov_b32 s{sEO+1}, {64*2048}')
    a(f'{tag}_VF:')
    a(f's_lshl_b32 s{sEO+2}, s{sEO}, 1\ns_add_u32 s{sEO+3}, s{sEO+2}, s{sEO}')
    class RS:
        def __rmul__(self, i): return ['0', f's{sEO}', f's{sEO+2}', f's{sEO+3}'][i]
    acc = gemm_loop(a, tag+'_VF', BN, WM, WN, 'row', False, 16, 64*2048, 128, RS(), f's{sEO+1}', ldflav=ldflav)
    a(f's_cmp_eq_u32 s{sTY}, 3\ns_cbranch_scc1 {tag}_FE')
    blockbase(14, KV_BASE + 8192)
    a(f'''v_bfe_u32 v{T}, v0, 1, 4
    v_lshlrev_b32 v{T}, 4, v{T}
    v_and_b32 v{T+1}, 1, v0
    v_lshl_add_u32 v{T}, v{T+1}, 8, v{T}
    v_cmp_eq_u32 vcc, 1, v{T+1}
    v_bfe_u32 v{T+1}, v0, 5, 1
    v_lshl_add_u32 v{T}, v{T+1}, 10, v{T}
    s_and_b32 s{g.sM0}, s{g.sB}, 1
    s_lshl_b32 s{g.sM0}, s{g.sM0}, 12
    v_add_u32 v{T}, s{g.sM0}, v{T}
    v_mov_b32 v{T+1}, 0x05040100
    v_mov_b32 v{T+2}, 0x03020706
    v_cndmask_b32 v{T+1}, v{T+1}, v{T+2}, vcc''')
    n = 0
    for mt in range(MT):
        for nt in range(NT):
            for m in range(2):
                p = P + 8 * (n % 4); n += 1
                for j in range(4): a(f'v_cvt_pk_bf16_f32 v{p+j}, v{acc(mt,nt)+8*m+j}, v{acc(mt,nt)+8*m+4+j}')
                for j in range(4): a(f'v_mov_b32_dpp v{p+4+j}, v{p+j} quad_perm:[1,0,3,2] row_mask:0xf bank_mask:0xf')
                for j in range(4): a(f'v_perm_b32 v{p+j}, v{p+4+j}, v{p+j}, v{T+1}')
                a(f'buffer_store_dwordx4 {v(p,4)}, v{T}, {W}, s{sEO} offen offset:{nt*2048+m*512}{stflav}')
        a(f's_add_u32 s{sEO}, s{sEO}, {32*16384}')
    a(f's_branch {done}')
    a(f'{tag}_FE:')
    a(f'''s_mul_i32 s{sEO}, s{sCB}, {BN}
    s_lshl_b32 s{g.sM0}, s{g.sB}, 6
    s_add_u32 s{sEO}, s{sEO}, s{g.sM0}
    s_lshl_b32 s{sEO}, s{sEO}, 12
    s_lshl_b32 s{g.sM0}, s{sRB}, 9
    s_add_u32 s{sEO}, s{sEO}, s{g.sM0}
    s_mul_i32 s{g.sM0}, s{g.sA}, {MT*64}
    s_add_u32 s{sEO}, s{sEO}, s{g.sM0}
    s_add_u32 s{sEO}, s{sEO}, {X1T_BASE}
    s_add_u32 s{sEO+1}, s{sEO}, {32*4096}
    v_and_b32 v{T}, 31, v0
    v_lshlrev_b32 v{T}, 12, v{T}
    v_bfe_u32 v{T+1}, v0, 5, 1
    v_lshl_add_u32 v{T}, v{T+1}, 4, v{T}''')
    n = 0
    for nt in range(NT):
        for mt in range(MT):
            for m in range(2):
                p = P + 4 * (n % 8); n += 1
                for j in range(4): a(f'v_cvt_pk_bf16_f32 v{p+j}, v{acc(mt,nt)+8*m+2*j}, v{acc(mt,nt)+8*m+2*j+1}')
                a(f's_nop 1\nv_permlane32_swap_b32 v{p}, v{p+2}\nv_permlane32_swap_b32 v{p+1}, v{p+3}')
                a(f'buffer_store_dwordx4 {v(p,4)}, v{T}, {W}, s{sEO+nt} offen offset:{mt*64+m*32}{stflav}')
    a(f's_branch {done}')
```

```python
MB = 1 << 20
WS_SIZE = 256 * MB
MSG0 = 0
MSG1 = 2 * MB
UNIT = 16384
KV_BASE = 4 * MB
Q_BASE = 36 * MB
KVM_BASE = 52 * MB
O_BASE = 84 * MB
X1T_BASE = 100 * MB
Z_BASE = 104 * MB
FD_BASE = 108 * MB
FI_BASE = 110 * MB
WT_BASE = 112 * MB
G_BASE = 118 * MB
CFG_BASE = 249 * MB
STAMP_BASE = 250 * MB
```

```python
from asmlib import *
from layout import *
from gemm import *
from gemm1 import sRB, sCB
from rec import srd, WS, TS, f2u
import math
W = f's[{WS}:{WS+3}]'
sWv = G.sWv
sTK = 84
sU0, sU1, sU2, sU3 = 85, 86, 87, 88

def trig_row(a, dst, fv, ph, base, scale):
    a(f'v_mad_u32_u24 v20, v{base}, v{fv}, v{ph}')
    for e in range(8):
        if e: a(f'v_add_u32 v20, v20, v{fv}')
        a(f'v_and_b32 v{21+e}, 1023, v20\nv_cvt_f32_u32 v{21+e}, v{21+e}\nv_mul_f32 v{21+e}, {f2u(1/1024):#x}, v{21+e}')
    for e in range(8): a(f'v_cos_f32 v{21+e}, v{21+e}')
    if scale is not None:
        a('s_nop 0')
        for e in range(8): a(f'v_mul_f32 v{21+e}, v{scale}, v{21+e}')
    a('s_nop 0')
    for j in range(4): a(f'v_cvt_pk_bf16_f32 v{dst+j}, v{21+2*j}, v{22+2*j}')

def gen_prep(a, tag, stflav=''):
    a(f'''s_lshl_b32 s{sU0}, s{sTK}, 2
    s_lshr_b32 s{sU1}, s{sWv}, 1
    s_add_u32 s{sU0}, s{sU0}, s{sU1}
    s_and_b32 s{sU1}, s{sWv}, 1
    s_lshl_b32 s{sU1}, s{sU1}, 6
    v_add_u32 v1, s{sU1}, v0
    v_lshlrev_b32 v2, 3, v1
    s_lshr_b32 s{sU2}, s{sU0}, 1
    s_and_b32 s{sU3}, s{sU0}, 1
    s_lshl_b32 s{sU3}, s{sU3}, 8
    s_cmp_eq_u32 s{sU0}, 1
    s_cselect_b32 s{sU2}, 512, s{sU2}
    s_cselect_b32 s{sU3}, 0, s{sU3}
    v_mov_b32 v3, s{sU2}
    v_mov_b32 v4, s{sU3}
    s_mov_b32 s{sU2}, {f2u(2.0**-20):#x}
    s_cmp_lt_u32 s{sU0}, 2
    s_cselect_b32 s{sU2}, {f2u(2.0**-21):#x}, s{sU2}
    v_mov_b32 v5, s{sU2}''')
    trig_row(a, 8, 3, 4, 2, 5)
    a(f'''v_lshlrev_b32 v6, 4, v1
    s_lshl_b32 s{sU2}, s{sU0}, 11
    s_add_u32 s{sU3}, s{sU2}, {FI_BASE}
    buffer_store_dwordx4 v[8:11], v6, {W}, s{sU3} offen{stflav}''')
    a(f'v_lshlrev_b32 v2, 2, v1\nv_mul_u32_u24 v20, s{sU0}, v2')
    for j in range(4):
        if j: a(f'v_add_u32 v20, s{sU0}, v20')
        a(f'v_and_b32 v{21+j}, 1023, v20\nv_cvt_f32_u32 v{21+j}, v{21+j}\nv_mul_f32 v{21+j}, {f2u(1/1024):#x}, v{21+j}')
    for j in range(4): a(f'v_sin_f32 v{25+j}, v{21+j}')
    for j in range(4): a(f'v_cos_f32 v{21+j}, v{21+j}')
    a(f'''s_bitcmp1_b32 s{sU0}, 0
    s_cselect_b32 s{sU3}, 1.0, -1.0
    v_mov_b32 v3, s{sU3}
    v_cmp_eq_u32 vcc, 0, v1
    s_nop 1
    v_cndmask_b32 v25, v25, v3, vcc''')
    for j in range(4): a(f'v_cvt_pk_bf16_f32 v{12+j}, v{21+j}, -v{25+j}')
    a(f's_add_u32 s{sU3}, s{sU2}, {FD_BASE}\nbuffer_store_dwordx4 v[12:15], v6, {W}, s{sU3} offen{stflav}')
    a(f'''s_load_dwordx2 s[4:5], s[0:1], 0
    s_load_dwordx2 s[6:7], s[0:1], 80
    s_lshl_b32 s{sU0}, s{sTK}, 3
    s_add_u32 s{sU0}, s{sU0}, s{sWv}
    s_lshl_b32 s{sU1}, s{sU0}, 11
    v_lshlrev_b32 v1, 4, v0
    s_waitcnt lgkmcnt(0)''')
    srd(a, TS, 4, 4*MB)
    a(f'buffer_load_dwordx4 v[32:35], v1, s[{TS}:{TS+3}], s{sU1} offen\nbuffer_load_dwordx4 v[36:39], v1, s[{TS}:{TS+3}], s{sU1} offen offset:1024')
    srd(a, TS, 6, 2048)
    a(f'buffer_load_dwordx4 v[40:43], v1, s[{TS}:{TS+3}], 0 offen\nbuffer_load_dwordx4 v[44:47], v1, s[{TS}:{TS+3}], 0 offen offset:1024')
    a('v_mov_b32 v2, 0\ns_waitcnt vmcnt(0)')
    for j in range(8):
        a(f'''v_lshlrev_b32 v3, 16, v{32+j}
        v_and_b32 v4, 0xffff0000, v{32+j}
        v_lshlrev_b32 v5, 16, v{40+j}
        v_and_b32 v7, 0xffff0000, v{40+j}
        v_mul_f32 v3, v3, v5
        v_mul_f32 v4, v4, v7
        v_cvt_pk_bf16_f32 v3, v3, v4
        v_lshlrev_b32 v4, 16, v3
        v_and_b32 v3, 0xffff0000, v3
        v_add_f32 v2, v2, v4
        v_add_f32 v2, v2, v3''')
    for sh in ('row_shr:1', 'row_shr:2', 'row_shr:4', 'row_shr:8'):
        a(f's_nop 1\nv_add_f32_dpp v2, v2, v2 {sh} row_mask:0xf bank_mask:0xf bound_ctrl:0')
    a('''v_mov_b32 v3, v2
    s_nop 1
    v_permlane16_swap_b32 v2, v3
    v_add_f32 v2, v2, v3
    v_mov_b32 v3, v2
    s_nop 1
    v_permlane32_swap_b32 v2, v3
    v_add_f32 v2, v2, v3''')
    rnd = lambda r: a(f'v_cvt_pk_bf16_f32 v{r}, v{r}, v{r}\nv_lshlrev_b32 v{r}, 16, v{r}')
    rnd(2)
    a(f'''v_mul_f32 v2, {f2u(-math.log2(math.e)):#x}, v2
    v_exp_f32 v2, v2
    s_nop 0
    v_add_f32 v2, 1.0, v2
    v_rcp_f32 v2, v2
    s_nop 0''')
    rnd(2)
    a('v_sub_f32 v3, 1.0, v2')
    rnd(3)
    a(f'''s_lshl_b32 s{sU1}, s{sU0}, 2
    s_add_u32 s{sU1}, s{sU1}, {G_BASE}
    s_add_u32 s{sU2}, s{sU1}, 8192
    s_mov_b64 exec, 0x8000
    buffer_store_dword v2, off, {W}, s{sU1}{stflav}
    buffer_store_dword v3, off, {W}, s{sU2}{stflav}
    s_mov_b64 exec, -1''')

def gen_wt(a, tag, stflav=''):
    a(f'''s_load_dwordx4 s[4:7], s[0:1], 64
    s_mul_i32 s{sU0}, s{sTK}, 32832
    s_lshl_b32 s{sU1}, s{sWv}, 10
    s_add_u32 s{sU0}, s{sU0}, s{sU1}
    v_lshlrev_b32 v1, 4, v0
    s_barrier
    s_waitcnt lgkmcnt(0)''')
    for arr in range(2):
        srd(a, TS, 4 + 2*arr, 2048*1026)
        for i in range(5):
            if i == 4: a(f's_cmp_lg_u32 s{sWv}, 0\ns_cbranch_scc1 {tag}_S{arr}')
            a(f's_add_u32 m0, s{sU1}, {arr*33792 + i*8192}\ns_add_u32 s{sU2}, s{sU0}, {i*8192}')
            a(f'buffer_load_dwordx4 v1, s[{TS}:{TS+3}], s{sU2} offen lds')
        a(f'{tag}_S{arr}:')
    a(f'''v_and_b32 v2, 31, v0
    v_lshrrev_b32 v3, 5, v0
    v_mul_u32_u24 v4, 1026, v2
    v_lshl_add_u32 v4, v3, 1, v4
    s_lshl_b32 s{sU2}, s{sWv}, 2
    v_add_u32 v4, s{sU2}, v4
    v_lshlrev_b32 v5, 13, v3
    v_lshl_add_u32 v5, v2, 2, v5
    s_lshl_b32 s{sU0}, s{sWv}, 14
    s_lshl_b32 s{sU2}, s{sTK}, 7
    s_add_u32 s{sU0}, s{sU0}, s{sU2}
    s_add_u32 s{sU0}, s{sU0}, {WT_BASE}
    s_waitcnt vmcnt(0)
    s_barrier''')
    for j0 in range(0, 33, 6):
        js = list(range(j0, min(33, j0+6)))
        for q, j in enumerate(js):
            a(f'ds_read_u16 v{8+2*q}, v4 offset:{32*j}\nds_read_u16 v{9+2*q}, v4 offset:{33792+32*j}')
        a('s_waitcnt lgkmcnt(0)')
        for q, j in enumerate(js):
            a(f'v_lshl_or_b32 v{24+j}, v{9+2*q}, 16, v{8+2*q}')
            a(f'buffer_store_dword v{24+j}, v5, {W}, s{sU0} offen{stflav}\ns_add_u32 s{sU0}, s{sU0}, {16*8192}')

AT = dict(vIDX=1, vLD=2, vVR=3, vOS=4, vGL=5, vM=6, vM2=8, vT=7, PK=12, CM=16, MK=20, GT=36, L=44, PM=48, PX=54, ONES=58,
          S=66, OD=78, T=112, Q=128, KX=160, VX=192, VM=224)
def gen_attn_setup(a):
    r = AT
    a(f'''v_mov_b32 v{r['vIDX']}, 0xdddd8888
    v_lshlrev_b32 v{r['vLD']}, 4, v0
    v_and_b32 v10, 15, v0
    v_bfe_u32 v11, v0, 4, 1
    v_lshrrev_b32 v9, 5, v0
    v_lshlrev_b32 v{r['vVR']}, 9, v11
    v_lshl_add_u32 v{r['vVR']}, v9, 8, v{r['vVR']}
    v_lshl_add_u32 v{r['vVR']}, v10, 4, v{r['vVR']}
    v_lshlrev_b32 v{r['vT']}, 4, v11
    v_lshl_add_u32 v{r['vT']}, v9, 2, v{r['vT']}
    v_lshlrev_b32 v{r['vGL']}, 2, v{r['vT']}
    v_lshlrev_b32 v{r['vOS']}, 13, v{r['vT']}
    v_lshl_add_u32 v{r['vOS']}, v10, 4, v{r['vOS']}''')
    a(f'''v_and_b32 v{r['vM']}, 3, v10
    v_bfe_u32 v11, v10, 2, 1
    v_lshl_add_u32 v{r['vM']}, v11, 4, v{r['vM']}
    v_lshrrev_b32 v11, 3, v10
    v_lshl_add_u32 v{r['vM']}, v11, 2, v{r['vM']}
    v_sub_u32 v{r['vM']}, v{r['vM']}, v{r['vT']}
    v_mov_b32 v9, 0xff800000''')
    for qt in range(2):
        for kt in range(2):
            for q in range(4):
                a(f'v_cmp_gt_i32 vcc, {8*kt+q-8*qt}, v{r["vM"]}\ns_nop 1\nv_cndmask_b32 v{r["MK"]+(qt*2+kt)*4+q}, 0, v9, vcc')
    a('v_cmp_gt_u32 vcc, 32, v0\ns_nop 1')
    for q in range(4): a(f'v_cndmask_b32 v{r["CM"]+q}, 0, v9, vcc')
    for q in range(8): a(f'v_mov_b32 v{r["ONES"]+q}, 0x3f803f80')
    for q in range(6): a(f'v_mov_b32 v{r["PM"]+q}, 0')
    a(f's_mov_b32 s40, {f2u(128**-0.5 * math.log2(math.e)):#x}\ns_mov_b32 s41, {f2u(-128**-0.5 * math.log2(math.e)):#x}')

def gen_attn(a, ldflav='', stflav=''):
    r = AT; S, T, Q, KX, VX, VM, OD, L, PM, PX = (r[k] for k in ('S','T','Q','KX','VX','VM','OD','L','PM','PX'))
    vM, vM2, vT, vIDX = r['vM'], r['vM2'], r['vT'], r['vIDX']
    def ld(dst, n, sbase, vo):
        for i in range(n):
            if i % 4 == 0 and i: a(f's_add_u32 s{sbase}, s{sbase}, 4096')
            a(f'buffer_load_dwordx4 {v(dst+4*i,4)}, v{vo}, {W}, s{sbase} offen offset:{(i%4)*1024}{ldflav}')
    a(f's_lshl_b32 s{sU1}, s{sU0}, 13\ns_add_u32 s{sU1}, s{sU1}, {Q_BASE}'); ld(Q, 8, sU1, r['vLD'])
    a(f's_lshl_b32 s{sU2}, s{sU0}, 14\ns_add_u32 s{sU1}, s{sU2}, {KVM_BASE}'); ld(T, 4, sU1, r['vLD'])
    a(f's_add_u32 s{sU3}, s{sU2}, {KV_BASE}'); ld(KX, 16, sU3, r['vLD'])
    a(f's_add_u32 s{sU1}, s{sU1}, 4096'); ld(VM, 2, sU1, r['vVR'])
    a(f's_lshr_b32 s{sU1}, s{sU0}, 5\ns_lshl_b32 s{sU2}, s{sU1}, 7\ns_add_u32 s{sU2}, s{sU2}, {G_BASE}')
    for qt in range(2): a(f'buffer_load_dwordx4 {v(r["GT"]+4*qt,4)}, v{r["vGL"]}, {W}, s{sU2} offen offset:{32*qt}{ldflav}')
    a(f'''s_lshl_b32 s{sU1}, s{sU1}, 18
    s_and_b32 s{sU2}, s{sU0}, 31
    s_lshl_b32 s{sU2}, s{sU2}, 8
    s_add_u32 s{sU1}, s{sU1}, s{sU2}
    s_add_u32 s{sU1}, s{sU1}, {O_BASE}''')
    for qt in range(2):
        for q in range(32): a(f'v_mov_b32 v{OD+q}, 0')
        for q in range(4): a(f'v_mov_b32 v{L+q}, 0')
        if qt == 0: a('s_waitcnt vmcnt(12)')
        for k in range(4):
            qk = v(Q+(qt*4+k)*4,4)
            a(f'v_mfma_f32_16x16x32_bf16 {v(S,4)}, {v(T+4*k,4)}, {qk}, {v(r["CM"],4) if k==0 else v(S,4)}')
            for t in range(2):
                d = v(S+4+4*t,4)
                a(f'v_mfma_f32_16x16x32_bf16 {d}, {v(KX+(t*4+k)*4,4)}, {qk}, {v(r["MK"]+(qt*2+t)*4,4) if k==0 else d}')
        a(f'''s_nop 7
        v_max3_f32 v{vM}, v{S}, v{S+1}, v{S+2}
        v_max3_f32 v{vM2}, v{S+3}, v{S+4}, v{S+5}
        v_max3_f32 v{vM}, v{vM}, v{S+6}, v{S+7}
        v_max3_f32 v{vM2}, v{vM2}, v{S+8}, v{S+9}
        v_max3_f32 v{vM}, v{vM}, v{S+10}, v{S+11}
        v_max_f32 v{vT}, v{vM}, v{vM2}
        v_max_f32 v{vM}, v{vM}, v{vM2}
        s_nop 1
        v_permlane32_swap_b32 v{vM}, v{vT}
        v_max_f32 v{vM2}, v{vM}, v{vT}
        v_max_f32 v{vM}, v{vM}, v{vT}
        s_nop 1
        v_permlane16_swap_b32 v{vM}, v{vM2}
        v_max_f32 v{vM}, v{vM}, v{vM2}
        v_mul_f32 v{vM2}, s41, v{vM}''')
        for q in range(0, 12, 2): a(f'v_pk_fma_f32 {v(S+q,2)}, {v(S+q,2)}, s[40:41], {v(vM2,2)} op_sel_hi:[1,0,0]')
        for q in range(12): a(f'v_exp_f32 v{S+q}, v{S+q}')
        a(f'v_cvt_pk_bf16_f32 v{PM+2}, v{S}, v{S+1}\nv_cvt_pk_bf16_f32 v{PM+3}, v{S+2}, v{S+3}')
        for q in range(4): a(f'v_cvt_pk_bf16_f32 v{PX+q}, v{S+4+2*q}, v{S+5+2*q}')
        a('s_waitcnt vmcnt(0)' if qt == 0 else 's_nop 0')
        smx = lambda d, A, B, hf: a(f'v_smfmac_f32_16x16x64_bf16 {v(d,4)}, {v(A,4)}, {v(B,8)}, v{vIDX}{" abid:1" if hf else ""}')
        smx(L, PM+2, r['ONES'], 0); smx(L, PX, r['ONES'], 0)
        for n in range(4):
            for hf in range(2):
                smx(OD+(n*2+hf)*4, PX, VX+8*n, hf)
                smx(OD+(n*2+hf)*4, PM+2 if n % 2 == 0 else PM, VM-4+4*(n>>1), hf)
            if n == 0:
                for q in range(4): a(f'v_rcp_f32 v{L+q}, v{L+q}')
            if n == 1:
                for q in range(4): a(f'v_mul_f32 v{L+q}, v{L+q}, v{r["GT"]+4*qt+q}')
        for t in range(8):
            for h in range(2): a(f'v_pk_mul_f32 {v(OD+4*t+2*h,2)}, {v(OD+4*t+2*h,2)}, {v(L+2*h,2)}')
        for q in range(4):
            pk = S + 2 + 4*(q & 1) if False else (r['PK'] if q % 2 == 0 else 232)
            for n in range(4): a(f'v_cvt_pk_bf16_f32 v{pk+n}, v{OD+8*n+q}, v{OD+8*n+4+q}')
            a(f's_add_u32 s{sU2}, s{sU1}, {(8*qt+q)*8192}\nbuffer_store_dwordx4 {v(pk,4)}, v{r["vOS"]}, {W}, s{sU2} offen{stflav}')

F_W64, F_W32, F_TW1, F_TW2, F_ST = 0, 24576, 30720, 47104, 65536
def gen_fft_tables(a):
    a('s_barrier\nv_and_b32 v1, 31, v0\nv_lshrrev_b32 v2, 5, v0\nv_lshlrev_b32 v2, 2, v2\nv_lshlrev_b32 v3, 4, v0')
    def frag(n_reg, k0_reg, mask, inv, dst_s):
        for e in range(8):
            a(f'v_add_u32 v{8+e}, {8*(e>>2)+(e&3)}, v{k0_reg}\nv_mul_u32_u24 v{8+e}, v{8+e}, v{n_reg}\nv_and_b32 v{8+e}, {mask}, v{8+e}\nv_cvt_f32_u32 v{8+e}, v{8+e}\nv_mul_f32 v{8+e}, {f2u(inv):#x}, v{8+e}')
        for e in range(8): a(f'v_sin_f32 v{16+e}, v{8+e}')
        for e in range(8): a(f'v_cos_f32 v{8+e}, v{8+e}')
        a('s_nop 0')
        for j in range(4):
            a(f'v_cvt_pk_bf16_f32 v{24+j}, v{8+2*j}, v{9+2*j}\nv_cvt_pk_bf16_f32 v{28+j}, v{16+2*j}, v{17+2*j}\nv_cvt_pk_bf16_f32 v{32+j}, -v{16+2*j}, -v{17+2*j}')
    a(f'''s_lshr_b32 s{sU0}, s{sWv}, 2
    s_lshl_b32 s{sU0}, s{sU0}, 5
    v_add_u32 v4, s{sU0}, v1
    s_and_b32 s{sU0}, s{sWv}, 3
    s_lshl_b32 s{sU0}, s{sU0}, 4
    v_add_u32 v5, s{sU0}, v2
    s_lshl_b32 s{sU0}, s{sWv}, 10
    v_add_u32 v6, s{sU0}, v3''')
    frag(4, 5, 63, 1/64, None)
    for kd in range(3): a(f'ds_write_b128 v6, {v(24+4*kd,4)} offset:{F_W64+kd*8192}')
    a(f'''s_and_b32 s{sU0}, s{sWv}, 1
    s_lshl_b32 s{sU1}, s{sU0}, 4
    v_add_u32 v5, s{sU1}, v2
    s_lshl_b32 s{sU0}, s{sU0}, 10
    v_add_u32 v7, s{sU0}, v3''')
    frag(1, 5, 31, 1/32, None)
    for kd in range(3): a(f'ds_write_b128 v7, {v(24+4*kd,4)} offset:{F_W32+kd*2048}')
    a(f'''s_lshl_b32 s{sU0}, s{sWv}, 11
    v_add_u32 v6, s{sU0}, v3
    s_lshl_b32 s{sU0}, s{sWv}, 3
    v_add_u32 v5, s{sU0}, v2
    s_and_b32 s{sU0}, s{sU0}, 31
    v_add_u32 v7, s{sU0}, v2''')
    for (n_reg, k_reg, off) in ((1, 5, F_TW1), (4, 7, F_TW2)):
        for b in range(4):
            a(f'v_add_u32 v{8+b}, {b}, v{k_reg}\nv_mul_u32_u24 v{8+b}, v{8+b}, v{n_reg}\nv_cvt_f32_u32 v{8+b}, v{8+b}\nv_mul_f32 v{8+b}, {f2u(1/2048):#x}, v{8+b}')
        for b in range(4): a(f'v_sin_f32 v{16+b}, v{8+b}')
        for b in range(4): a(f'v_cos_f32 v{12+b}, v{8+b}')
        a(f's_nop 0\nds_write_b128 v6, v[12:15] offset:{off}\nds_write_b128 v6, v[16:19] offset:{off+1024}\ns_waitcnt lgkmcnt(0)')
    a('s_waitcnt lgkmcnt(0)\ns_barrier')

def gen_fft(a, tag, ldflav='', stflav=''):
    vL16, vTR, vWT, vXW, vT = 1, 2, 3, 4, 6
    TF = 8
    OPR, OPI = 32, 48
    AR, AI = 64, 96
    FL = 128; SV = 160; TM = 192
    sF, sP = sU0, sU1
    a(f'''s_lshl_b32 s{sF}, s{sTK}, 3
    s_add_u32 s{sF}, s{sF}, s{sWv}
    v_lshlrev_b32 v{vL16}, 4, v0
    s_lshl_b32 s{sU2}, s{sWv}, 13
    s_add_u32 s{sU2}, s{sU2}, {F_ST}
    v_bfe_u32 v{vT}, v0, 2, 2
    v_lshrrev_b32 v{vT+1}, 5, v0
    v_lshl_add_u32 v{vT}, v{vT+1}, 2, v{vT}
    v_lshlrev_b32 v{vTR}, 7, v{vT}
    v_bfe_u32 v{vT}, v0, 4, 1
    v_lshl_add_u32 v{vTR}, v{vT}, 5, v{vTR}
    v_and_b32 v{vT}, 3, v0
    v_lshl_add_u32 v{vTR}, v{vT}, 3, v{vTR}
    v_add_u32 v{vTR}, s{sU2}, v{vTR}
    v_and_b32 v{vT}, 31, v0
    v_lshlrev_b32 v{vWT}, 2, v{vT}
    v_lshl_add_u32 v{vWT}, v{vT+1}, 9, v{vWT}
    v_lshlrev_b32 v{vXW}, 4, v{vT}
    v_lshl_add_u32 v{vXW}, v{vT+1}, 12, v{vXW}
    s_lshr_b32 s{sU3}, s{sWv}, 2
    s_lshl_b32 s{sU3}, s{sU3}, 15
    v_add_u32 v{vXW}, s{sU3}, v{vXW}
    s_and_b32 s{sU3}, s{sWv}, 3
    s_lshl_b32 s{sU3}, s{sU3}, 2
    s_add_u32 s{sU3}, s{sU3}, {F_ST}
    v_add_u32 v{vXW}, s{sU3}, v{vXW}
    s_cmp_eq_u32 s{sF}, 0
    s_cselect_b32 s{sP}, 1, 0
    s_barrier
{tag}_PASS:''')
    a(f'''s_lshl_b32 s89, s{sF}, 1
    s_add_u32 s89, s89, s{sP}
    s_lshl_b32 s89, s89, 12
    s_add_u32 s89, s89, {X1T_BASE}
    s_add_u32 s90, s89, 4096
    s_cmp_eq_u32 s{sF}, 0
    s_cselect_b32 s90, {WS_SIZE}, s90
    s_mov_b32 m0, s{sU2}
    s_lshl_b32 s91, s{sP}, 9
    s_add_u32 s91, s91, s{sF}
    s_lshl_b32 s91, s91, 13
    s_add_u32 s91, s91, {WT_BASE}''')
    for i in range(4): a(f'buffer_load_dwordx4 v{vL16}, {W}, s89 offen offset:{i*1024} lds{ldflav}')
    a(f's_add_u32 m0, s{sU2}, 4096\ns_add_u32 s92, s91, 4096')
    for i in range(4): a(f'buffer_load_dwordx4 v{vL16}, {W}, s90 offen offset:{i*1024} lds{ldflav}')
    for blk in range(2):
        for i in range(16):
            a(f'buffer_load_dword v{FL+16*blk+i}, v{vWT}, {W}, s{91+blk} offen offset:{(8*(i>>2)+(i&3))*128}{ldflav}')
    a('s_waitcnt vmcnt(32)')
    for c, OP in ((0, OPR), (1, OPI)):
        for blk in range(2):
            for ks in range(2):
                for rd in range(2):
                    a(f'ds_read_b64_tr_b16 {v(OP+8*blk+4*ks+2*rd,2)}, v{vTR} offset:{c*4096+(16*ks+8*rd)*128+blk*64}')
        a('s_waitcnt lgkmcnt(0)')
    def dft(groups, tabbase, kstride, inverse, data_is_A):
        def rdt(gi):
            st = TF + 12*(gi & 1)
            for kd in range(3): a(f'ds_read_b128 {v(st+4*kd,4)}, v{vL16} offset:{tabbase+kd*kstride+groups[gi][0]*1024}')
        rdt(0)
        for gi, (ti, items) in enumerate(groups):
            if gi + 1 < len(groups): rdt(gi+1); a('s_waitcnt lgkmcnt(3)')
            else: a('s_waitcnt lgkmcnt(0)')
            st = TF + 12*(gi & 1); C, Sp, Sn = v(st,4), v(st+4,4), v(st+8,4)
            for (blk, oi, first) in items:
                dr, di = v(AR+16*blk,16), v(AI+16*blk,16); xr, xi = v(OPR+4*oi,4), v(OPI+4*oi,4)
                for (d, t, x, f0) in ((dr, C, xr, first), (di, C, xi, first), (dr, Sn if inverse else Sp, xi, False), (di, Sp if inverse else Sn, xr, False)):
                    A_, B_ = (x, t) if data_is_A else (t, x)
                    a(f'v_mfma_f32_32x32x16_bf16 {d}, {A_}, {B_}, {"0" if f0 else d}')
        a('s_nop 15')
    def cmul(blk, q, C, Sg, plus):
        R_, I_ = AR+16*blk+4*q, AI+16*blk+4*q
        ng = ' neg_lo:[0,1,0] neg_hi:[0,1,0]'
        for h in range(2):
            a(f'v_pk_mul_f32 {v(TM+2*h,2)}, {v(R_+2*h,2)}, {v(C+2*h,2)}\nv_pk_mul_f32 {v(TM+4+2*h,2)}, {v(I_+2*h,2)}, {v(C+2*h,2)}')
        for h in range(2):
            a(f'v_pk_fma_f32 {v(TM+2*h,2)}, {v(I_+2*h,2)}, {v(Sg+2*h,2)}, {v(TM+2*h,2)}{ng if plus else ""}')
            a(f'v_pk_fma_f32 {v(TM+4+2*h,2)}, {v(R_+2*h,2)}, {v(Sg+2*h,2)}, {v(TM+4+2*h,2)}{"" if plus else ng}')
        for h in range(2):
            a(f'v_cvt_pk_bf16_f32 v{OPR+8*blk+2*q+h}, v{TM+2*h}, v{TM+2*h+1}\nv_cvt_pk_bf16_f32 v{OPI+8*blk+2*q+h}, v{TM+4+2*h}, v{TM+5+2*h}')
    def twiddle(base, plus):
        def rd(i):
            st = TF + 8*(i & 1)
            a(f'ds_read_b128 {v(st,4)}, v{vL16} offset:{base+i*2048}\nds_read_b128 {v(st+4,4)}, v{vL16} offset:{base+i*2048+1024}')
        rd(0)
        for i in range(8):
            if i < 7: rd(i+1); a('s_waitcnt lgkmcnt(2)')
            else: a('s_waitcnt lgkmcnt(0)')
            st = TF + 8*(i & 1)
            cmul(i >> 2, i & 3, st, st+4, plus)
    g32 = [(ks, [(blk, 2*blk+ks, ks == 0) for blk in range(2)]) for ks in range(2)]
    g64 = [(4*blk+ks, [(blk, ks, ks == 0)]) for blk in range(2) for ks in range(4)]
    dft(g32, F_W32, 2048, False, True)
    twiddle(F_TW1, False)
    dft(g64, F_W64, 8192, False, False)
    a('s_waitcnt vmcnt(0)')
    for i in range(8):
        for b in range(4):
            a(f'v_lshlrev_b32 v{TF+b}, 16, v{FL+4*i+b}\nv_and_b32 v{TF+4+b}, 0xffff0000, v{FL+4*i+b}')
        cmul(i >> 2, i & 3, TF, TF+4, True)
    dft(g64, F_W64, 8192, True, True)
    twiddle(F_TW2, True)
    dft(g32, F_W32, 2048, True, False)
    a(f's_cmp_eq_u32 s{sP}, 0\ns_cbranch_scc1 {tag}_P2')
    for q in range(32): a(f'v_mov_b32 v{SV+q}, v{AR+q}')
    a(f's_mov_b32 s{sP}, 0\ns_branch {tag}_PASS\n{tag}_P2:')
    a(f's_cmp_lg_u32 s{sF}, 0\ns_cbranch_scc1 {tag}_P3')
    for q in range(32): a(f'v_mov_b32 v{AI+q}, v{SV+q}')
    a(f'{tag}_P3:\ns_barrier')
    for blk in range(2):
        for i in range(16):
            a(f'v_cvt_pk_bf16_f32 v{FL+16*blk+i}, v{AR+16*blk+i}, v{AI+16*blk+i}')
            a(f'ds_write_b32 v{vXW}, v{FL+16*blk+i} offset:{(8*(i>>2)+(i&3))*1024+blk*512}')
            if i % 8 == 7: a('s_waitcnt lgkmcnt(4)')
    a(f'''v_add_u32 v{vT}, s{sU2}, v{vL16}
    s_lshl_b32 s89, s{sTK}, 16
    s_lshl_b32 s90, s{sWv}, 13
    s_add_u32 s89, s89, s90
    s_add_u32 s89, s89, {Z_BASE}
    s_add_u32 s90, s89, 4096
    s_waitcnt lgkmcnt(0)
    s_barrier''')
    for i in range(8): a(f'ds_read_b128 {v(AR+4*i,4)}, v{vT} offset:{i*1024}')
    for i in range(8):
        a(f's_waitcnt lgkmcnt({7-i})\nbuffer_store_dwordx4 {v(AR+4*i,4)}, v{vL16}, {W}, s{89+(i>>2)} offen offset:{(i&3)*1024}{stflav}')

def gen_gemm2(a, tag, BN, ldflav=''):
    g = G; T = g.vT
    WM, WN = (2, 4) if BN == 256 else (4, 2)
    MT, NT = 256 // WM // 32, BN // WN // 32
    RPI = 512 // BN
    for i in range(4): a(f's_mov_b32 s{g.XS+i}, s{WS+i}\ns_mov_b32 s{g.WSR+i}, s{WS+i}')
    a(f'''s_lshl_b32 s{g.sXo}, s{sRB}, 12
    s_add_u32 s{g.sXo}, s{g.sXo}, {Z_BASE}
    s_mul_i32 s{g.sWo}, s{sCB}, {2*BN}
    s_add_u32 s{g.sWo}, s{g.sWo}, {FI_BASE}''')
    gemm_setup(a, BN, WM, WN, 'chunk', 32768, 2048, True)
    a(f'''s_lshl_b32 s{sU0}, s{sRB}, 8
    s_mul_i32 s{sU1}, s{g.sA}, {MT*32}
    s_add_u32 s{sU0}, s{sU0}, s{sU1}
    s_lshl_b32 s{sU1}, s{sU0}, 2
    s_add_u32 s{sU1}, s{sU1}, {G_BASE+8192}
    v_and_b32 v3, 31, v0
    v_lshlrev_b32 v3, 2, v3''')
    for mt in range(MT): a(f'buffer_load_dword v{20+mt}, v3, {W}, s{sU1} offen offset:{mt*128}{ldflav}')
    acc = gemm_loop(a, tag+'_Z', BN, WM, WN, 'chunk', True, 16, 2*32768, 8*32768, 8*RPI*2048, 64*2048, ldflav=ldflav)
    for mt in range(MT):
        for nt in range(NT):
            for q in range(16): a(f'v_mul_f32 v{acc(mt,nt)+q}, v{20+mt}, v{acc(mt,nt)+q}')
    a(f'''s_load_dwordx2 s[4:5], s[0:1], 40
    s_load_dwordx2 s[6:7], s[0:1], 88
    s_lshl_b32 s{g.sXo}, s{sRB}, 21
    s_add_u32 s{g.sXo}, s{g.sXo}, {O_BASE}
    s_mul_i32 s{g.sWo}, s{sCB}, {2*BN}
    s_waitcnt lgkmcnt(0)''')
    srd(a, g.WSR, 4, 8*MB)
    srd(a, TS, 6, 4*MB)
    def wrow(a, t):
        a(f'''v_bfe_u32 v{t+2}, v{t}, 1, 2
        v_lshlrev_b32 v{t+2}, 5, v{t+2}
        v_and_b32 v{t+3}, 1, v{t}
        v_add_u32 v{t+2}, v{t+2}, v{t+3}
        v_lshrrev_b32 v{t}, 3, v{t}
        v_lshl_add_u32 v{t}, v{t}, 1, v{t+2}''')
    gemm_setup(a, BN, WM, WN, 'row', 8192, 2048, True, wrow)
    acc = gemm_loop(a, tag+'_O', BN, WM, WN, 'row', True, 64, 64*8192, 128, 2*RPI*2048, 16*2048, zero=False, ldflav=ldflav, w_stage2=112*2048)
    a(f'''s_lshl_b32 s{sU0}, s{sU0}, 11
    s_mul_i32 s{sU1}, s{sCB}, {2*BN}
    s_add_u32 s{sU0}, s{sU0}, s{sU1}
    s_lshl_b32 s{sU1}, s{g.sB}, 7
    s_add_u32 s{sU0}, s{sU0}, s{sU1}
    v_and_b32 v{T}, 31, v0
    v_lshlrev_b32 v{T}, 11, v{T}
    v_lshrrev_b32 v{T+1}, 5, v0
    v_lshl_add_u32 v{T}, v{T+1}, 4, v{T}''')
    n = 0
    for mt in range(MT):
        for nt in range(NT):
            for h in range(2):
                p = g.FR + 4 * (n % 8); n += 1
                for j in range(4): a(f'v_cvt_pk_bf16_f32 v{p+j}, v{acc(mt,nt)+8*h+2*j}, v{acc(mt,nt)+8*h+2*j+1}')
                a(f'buffer_store_dwordx4 {v(p,4)}, v{T}, s[{TS}:{TS+3}], s{sU0} offen offset:{nt*64+h*32}')
        a(f's_add_u32 s{sU0}, s{sU0}, {32*2048}')
```

```python
from asmlib import *
from layout import *
import math, struct

def f2u(f): return struct.unpack('<I', struct.pack('<f', f))[0]

WS = 8; TS = 12; DBG = 16
sRHO, sX, sC, sGQ, sW, sSTEP, sBUD = 20, 21, 22, 23, 24, 25, 26
sO1, sO2, sO3, sO4 = 27, 28, 29, 30
sT0, sKV, sKVM, sP0, sP1, sT1, sT2 = 33, 34, 35, 36, 37, 38, 39
sSC, sSELLO, sSELHI, sI16 = 40, 31, 42, 43
sWSB = 44
sWARM = 46
sJ = 48
sPW = 49
sLD = 50
sMODE = 51
sST = 56

LDS_P = 0
LDS_O = 12288
LDS_F = LDS_O + 8192
LDS_KV = 28672

def srd(a, d, base, nbytes):
    a(f's_mov_b32 s{d}, s{base}\ns_and_b32 s{d+1}, s{base+1}, 0xffff\ns_mov_b32 s{d+2}, {nbytes}\ns_mov_b32 s{d+3}, 0x20000')

def slot(a, dst, add, shift, base):
    if add: a(f's_add_u32 s{dst}, s{sSTEP}, {add}\ns_and_b32 s{dst}, s{dst}, 3')
    else: a(f's_and_b32 s{dst}, s{sSTEP}, 3')
    a(f's_lshl_b32 s{dst}, s{dst}, {shift}\ns_add_u32 s{dst}, s{dst}, s{base}')
SH_B1, SH_B2, SH_A = 18, 17, 19

def budget(a, out):
    a(f's_sub_u32 s{sBUD}, s{sBUD}, 1\ns_cbranch_scc1 {out}')

def make_sel(a, SEL, vE, t0, t1):
    a(f'''v_and_b32 v{t0}, 1, v{vE}
    v_lshlrev_b32 v{t0}, 4, v{t0}
    v_mov_b32 v{t1}, 0x3f80
    v_lshlrev_b32 v{t0}, v{t0}, v{t1}
    v_lshrrev_b32 v{t1}, 1, v{vE}''')
    for r in range(4):
        a(f'v_cmp_eq_u32 vcc, {r}, v{t1}\ns_nop 1\nv_cndmask_b32 v{SEL+r}, 0, v{t0}, vcc')

def gather_fsm(a, tag, n, load, regs, consume, vA, vB, done, on_fail, dup_nops=10, first_ts=None, last_ts=None):
    name = lambda q: f'{tag}_S' + ''.join(map(str, q))
    emitted = set(); todo = []; fails = []
    def want(q):
        if q not in emitted and q not in todo: todo.append(q)
        return name(q)
    def test(q):
        return [f's_waitcnt vmcnt({len(q)-1})', f'v_cmp_eq_u32 vcc, -1, v{regs(q[0])+3}']
    def head(q):
        a(f'{name(q)}:'); a('\n'.join(test(q))); a(f's_cbranch_vccnz {name(q)}_F')
    def ok(q, fall):
        emitted.add(q); fails.append(q)
        k = q[0]; first = len(q) == n; r = regs(k)
        a(f'{name(q)}_OK:')
        if first and first_ts: first_ts()
        if len(q) == 1 and last_ts: last_ts()
        if first: a(f'v_max_u32 v{vA}, v{r}, v{r+1}\nv_max_u32 v{vB}, v{r+2}, v{r+3}')
        else: a(f'v_max3_u32 v{vA}, v{vA}, v{r}, v{r+1}\nv_max3_u32 v{vB}, v{vB}, v{r+2}, v{r+3}')
        m = consume(k, first)
        rest_ = q[1:]
        if not rest_:
            a('\n'.join(m))
            if not fall: a(f's_branch {done}')
            return
        want(rest_)
        h = max(0, len(m) - 2)
        a('\n'.join(m[:h] + test(rest_) + m[h:]))
        if fall: a(f's_cbranch_vccnz {name(rest_)}_F')
        else: a(f's_cbranch_vccz {name(rest_)}_OK\ns_branch {name(rest_)}_F')
    q = tuple(range(n))
    head(q); main = []
    while q:
        ok(q, True); main.append(q); q = q[1:]
    def rest():
        for q in main[1:]:
            if len(q) > 1: head(q); a(f's_branch {name(q)}_OK')
        while fails or todo:
            while fails:
                q = fails.pop(0); k = q[0]
                a(f'{name(q)}_F:'); load(k); on_fail(n - len(q))
                if len(q) > 1:
                    a(f's_branch {want(q[1:] + q[:1])}')
                else:
                    for _ in range(3):
                        a(f's_nop {dup_nops}'); load(k)
                    a(f'{name(q)}_L:\ns_waitcnt vmcnt(3)\nv_cmp_eq_u32 vcc, -1, v{regs(k)+3}\ns_cbranch_vccz {name(q)}_OK')
                    load(k); on_fail(n)
                    a(f's_branch {name(q)}_L')
            if todo:
                q = todo.pop(0)
                if q not in emitted:
                    if len(q) > 1: head(q)
                    ok(q, False)
    return rest

def gen_rec(a, opt):
    DUAL = opt.get('intra', 'dual') == 'dual'
    LIN = ' sc1' if opt.get('intra') == 'sc1' else ''
    IN = ' sc1'
    EXIT = opt['exit']
    NSTEP = opt.get('nstep', 64)
    TL = opt.get('timeline', False)
    W = f's[{WS}:{WS+3}]'
    NST = 16
    def ts(i):
        if TL: a(f's_memtime s[{sST+2*i}:{sST+2*i+1}]')
    def rt(i):
        if TL: a(f's_memrealtime s[4:5]\ns_waitcnt lgkmcnt(0)\ns_mov_b32 s{sST+2*NST+8+i}, s4')
    def cnt(i):
        if TL: a(f's_add_u32 s{sST+2*NST+i}, s{sST+2*NST+i}, 1')
    def tl_dump(lbl, tmp):
        if TL:
            a(f's_cmp_lg_u32 s{sSTEP}, {TL+1}\ns_cbranch_scc1 {lbl}')
            dump(0, NST, 2, 0, tmp)
            a(f'{lbl}:')
    def dump(first, n, stride, slot0, tmp):
        a(f's_waitcnt lgkmcnt(0)\ns_lshl_b32 s{sT0}, s{sRHO}, 3\ns_add_u32 s{sT0}, s{sT0}, s{sW}\ns_lshl_b32 s{sT0}, s{sT0}, 7\ns_add_u32 s{sT0}, s{sT0}, {STAMP_BASE}')
        for i in range(n):
            a(f'v_mov_b32 v{tmp}, s{sST+first+stride*i}\nbuffer_store_dword v{tmp}, off, {W}, s{sT0} offset:{4*(slot0+i)}')
        a('s_waitcnt vmcnt(0)')
    def sleep(key, dflt=0):
        d = opt.get(key, dflt)
        if d: a(f's_sleep {d}')
    def nops(key, dflt=0):
        d = opt.get(key, dflt)
        while d > 0:
            a(f's_nop {min(d,16)-1}'); d -= 16
    a(f'''v_lshrrev_b32 v1, 6, v0
    v_and_b32 v0, 63, v0
    s_lshr_b32 s{sX}, s{sRHO}, 5
    v_readfirstlane_b32 s{sW}, v1
    s_and_b32 s{sC}, s{sRHO}, 31
    s_lshr_b32 s{sGQ}, s{sRHO}, 4
    s_and_b32 s{sI16}, s{sRHO}, 15
    s_mov_b32 s{sSTEP}, 0
    s_mov_b32 s{sBUD}, {opt.get('budget', 2000000)}
    s_mov_b32 s{sSC}, {f2u(128**-0.5 * math.log2(math.e))}
    s_mov_b32 s{sSC+1}, {f2u(-128**-0.5 * math.log2(math.e))}
    s_mov_b32 s{sSELLO}, 0x05040100
    s_mov_b32 s{sSELHI}, 0x07060302''')
    if TL:
        for i in range(2*NST+12): a(f's_mov_b32 s{sST+i}, 0')
    a(f's_cmp_lt_u32 s{sW}, 4\ns_cbranch_scc1 R_ATTN')

    a.c('================ projection waves ================')
    rt(0)
    vIDX, vB2R, vAT, vAV, vLW, vLR, vARM, vCH, vT, vKVD, vFR = range(1, 12)
    vSEN = 12; SEL = 16; RDD = 20
    AM = 24; ACC = 40; W1 = 64
    vI, vG, vT2 = AM+4, AM+5, AM+6
    acc = lambda m, t: ACC + (m*2+t)*4
    w1 = lambda m, t, k: W1 + (k*6 + m*2 + t)*8
    a(f'''s_sub_u32 s{sPW}, s{sW}, 4
    v_and_b32 v{vI}, 15, v0
    v_lshrrev_b32 v{vG}, 4, v0
    v_mov_b32 v{vIDX}, 0x4444
    v_mov_b32 v{vT}, 0xeeee
    v_cmp_lt_u32 vcc, 7, v{vI}''')
    for r in range(4): a(f'v_mov_b32 v{vSEN+r}, -1')
    a(f'v_cndmask_b32 v{vIDX}, v{vIDX}, v{vT}, vcc')
    a(f'''v_and_b32 v{vT}, 1, v{vG}
    v_lshlrev_b32 v{vT}, 2, v{vT}
    v_lshrrev_b32 v{vT2}, 1, v{vG}
    v_lshl_add_u32 v{vT}, v{vT2}, 4, v{vT}
    v_lshlrev_b32 v{vT}, 13, v{vT}
    v_lshl_add_u32 v{vT}, v{vI}, 2, v{vT}
    s_lshl_b32 s{sT0}, s{sPW}, 21
    s_lshl_b32 s{sT1}, s{sRHO}, 6
    s_add_u32 s{sT0}, s{sT0}, s{sT1}
    v_add_u32 v{vT}, s{sT0}, v{vT}''')
    for m in range(3):
        a(f's_load_dwordx2 s[4:5], s[0:1], {16+8*m}\ns_waitcnt lgkmcnt(0)')
        srd(a, TS, 4, 8*MB)
        for k in range(4):
            for b in range(8):
                row = 64*k + 32*(b>>2) + 8*(b&1) + 2*((b>>1)&1)
                a(f's_mov_b32 s{sT0}, {row*8192}\ns_mov_b32 s{sT1}, {(row+1)*8192}')
                a(f'buffer_load_dword v{w1(m,0,k)+b}, v{vT}, s[{TS}:{TS+3}], s{sT0} offen')
                a(f'buffer_load_dword v{w1(m,1,k)+b}, v{vT}, s[{TS}:{TS+3}], s{sT1} offen')
            a('s_waitcnt vmcnt(44)')
    a(f'''s_lshl_b32 s{sT0}, s{sX}, 1
    s_lshr_b32 s{sT1}, s{sPW}, 1
    s_add_u32 s{sT0}, s{sT0}, s{sT1}
    s_lshl_b32 s{sT0}, s{sT0}, 14
    s_and_b32 s{sT1}, s{sPW}, 1
    s_lshl_b32 s{sT1}, s{sT1}, 12
    s_add_u32 s{sT0}, s{sT0}, s{sT1}
    s_add_u32 s{sT0}, s{sT0}, {MB}
    v_lshl_add_u32 v{vB2R}, v0, 4, s{sT0}''')
    a(f'''s_lshr_b32 s{sT0}, s{sRHO}, 2
    s_lshl_b32 s{sT0}, s{sT0}, 14
    s_and_b32 s{sT1}, s{sRHO}, 3
    s_lshl_b32 s{sT2}, s{sT1}, 10
    s_add_u32 s{sO1}, s{sT2}, s{sT0}
    s_lshl_b32 s{sT2}, s{sPW}, 6
    s_add_u32 s{sT2}, s{sT2}, s{sO1}
    v_lshl_add_u32 v{vAT}, v{vG}, 4, s{sT2}
    v_lshrrev_b32 v{vT2}, 2, v{vI}
    v_lshl_add_u32 v{vAT}, v{vT2}, 8, v{vAT}
    v_and_b32 v{vT2}, 3, v{vI}
    v_lshl_add_u32 v{vAT}, v{vT2}, 2, v{vAT}
    s_lshl_b32 s{sT2}, s{sT1}, 9
    s_add_u32 s{sT2}, s{sT2}, s{sT0}
    s_add_u32 s{sO2}, s{sT2}, 4096
    s_and_b32 s{sT2}, s{sPW}, 1
    s_lshl_b32 s{sT2}, s{sT2}, 8
    s_add_u32 s{sT2}, s{sT2}, s{sO2}
    v_lshl_add_u32 v{vAV}, v{vI}, 4, s{sT2}
    v_lshl_add_u32 v{vAV}, v{vG}, 2, v{vAV}''')
    a(f'''v_lshl_add_u32 v{vARM}, v0, 4, s{sO1}
    v_and_b32 v{vT2}, 31, v0
    s_cmp_eq_u32 s{sPW}, 1
    s_cbranch_scc0 RP_A2
    v_lshl_add_u32 v{vARM}, v{vT2}, 4, s{sO2}
RP_A2:
    s_cmp_eq_u32 s{sPW}, 2
    s_cbranch_scc0 RP_A4
    s_lshl_b32 s{sT0}, s{sGQ}, 14
    s_lshl_b32 s{sT1}, s{sI16}, 9
    s_add_u32 s{sT0}, s{sT0}, s{sT1}
    s_add_u32 s{sT0}, s{sT0}, {MB}
    v_lshl_add_u32 v{vARM}, v{vT2}, 4, s{sT0}
RP_A4:''')
    a(f'''v_and_b32 v{vT2}, 1, v{vG}
    v_lshlrev_b32 v{vLW}, 11, v{vT2}
    v_lshrrev_b32 v{vT2}, 1, v{vG}
    v_lshl_add_u32 v{vLW}, v{vT2}, 8, v{vLW}
    v_lshl_add_u32 v{vLW}, v{vI}, 4, v{vLW}
    s_lshl_b32 s{sT0}, s{sPW}, 9
    v_add_u32 v{vLW}, s{sT0}, v{vLW}
    s_lshl_b32 s{sT0}, s{sPW}, 11
    v_lshl_add_u32 v{vLR}, v0, 4, s{sT0}''')
    a(f'''v_lshrrev_b32 v{vT2}, 2, v{vI}
    v_lshlrev_b32 v{vT2}, 1, v{vT2}
    v_and_b32 v{vCH}, 1, v{vI}
    v_add_u32 v{vT2}, v{vT2}, v{vCH}
    v_and_b32 v{vCH}, 2, v{vI}
    v_lshl_add_u32 v{vT2}, v{vCH}, 2, v{vT2}''')
    make_sel(a, SEL, vT2, vCH, RDD)
    a(f'''s_lshl_b32 s{sT0}, s{sGQ}, 2
    s_add_u32 s{sT0}, s{sT0}, s{sPW}
    s_lshl_b32 s{sT0}, s{sT0}, 14
    v_lshl_add_u32 v{vKVD}, v0, 4, s{sT0}
    s_lshl_b32 s{sLD}, s{sPW}, 14
    s_add_u32 s{sLD}, s{sLD}, {LDS_KV}
    s_mov_b32 s{sKV}, {KV_BASE}''')
    KVF = opt.get('kvflav', '')
    def stage(i0, i1, paced=False):
        for i in range(i0, i1):
            q, u = i >> 2, i & 3
            if u == 0 or i == i0: a(f's_add_u32 m0, s{sLD}, {q*4096}\ns_add_u32 s{sT0}, s{sKV}, {q*4096}')
            a(f'buffer_load_dwordx4 v{vKVD}, {W}, s{sT0} offen offset:{u*1024} lds{KVF}')
            if paced and i + 1 < i1:
                a(f's_sleep {paced}')
    SEN = v(vSEN, 4)
    a(f's_cmp_eq_u32 s{sPW}, 2\ns_cbranch_scc1 RP_I2')
    for sl in range(4):
        a(f's_add_u32 s{sT0}, s{sP1}, {sl << SH_A}\nbuffer_store_dwordx4 {SEN}, v{vARM}, {W}, s{sT0} offen{IN}')
    a('s_branch RP_I4\nRP_I2:')
    for sl in range(1, 4):
        a(f's_add_u32 s{sT0}, s{sP0}, {sl << SH_B2}\nbuffer_store_dwordx4 {SEN}, v{vARM}, {W}, s{sT0} offen{IN}')
    a(f'''s_load_dwordx2 s[4:5], s[0:1], 8
    v_and_b32 v{vT2}, 7, v0
    v_lshlrev_b32 v{vT2}, 11, v{vT2}
    v_bfe_u32 v{vCH}, v0, 3, 2
    v_lshl_add_u32 v{vT2}, v{vCH}, 4, v{vT2}
    s_lshl_b32 s{sT0}, s{sC}, 6
    s_waitcnt lgkmcnt(0)''')
    srd(a, TS, 4, 16384)
    a(f'buffer_load_dwordx4 {v(AM,4)}, v{vT2}, s[{TS}:{TS+3}], s{sT0} offen\ns_waitcnt vmcnt(0)')
    for r in range(4): a(f'v_min_u32 v{AM+r}, -2, v{AM+r}')
    a(f'buffer_store_dwordx4 {v(AM,4)}, v{vARM}, {W}, s{sP0} offen{IN}')
    a('RP_I4:\ns_waitcnt vmcnt(0)')
    rt(1)
    stage(0, 16)
    a(f's_add_u32 s{sKV}, s{sKV}, {32*16384}')
    for m in range(3):
        for k in range(4):
            for b in range(8):
                x0, x1 = w1(m,0,k)+b, w1(m,1,k)+b
                a(f'v_perm_b32 v{vT}, v{x1}, v{x0}, s{sSELLO}\nv_perm_b32 v{x1}, v{x1}, v{x0}, s{sSELHI}\nv_mov_b32 v{x0}, v{vT}')
    WA = opt.get('warm_ahead', 2)
    a(f'''s_lshl_b32 s{sT0}, s{sRHO}, 12
    s_lshl_b32 s{sT1}, s{sPW}, 10
    s_add_u32 s{sT0}, s{sT0}, s{sT1}
    s_add_u32 s{sT0}, s{sT0}, {KV_BASE + WA*32*16384}
    s_add_u32 s{sWARM}, s{sWSB}, s{sT0}
    s_addc_u32 s{sWARM+1}, s{sWSB+1}, 0
    v_mov_b32 v{vFR}, 0
    s_waitcnt vmcnt(0) lgkmcnt(0)
    s_barrier''')
    a(f's_cmp_lg_u32 s{sPW}, 0\ns_cbranch_scc1 RP_INITDONE')
    a(f'''v_mov_b32 v{vT}, 1
    s_mov_b64 exec, 1
    buffer_atomic_add v{vT}, off, s[{DBG}:{DBG+3}], 0 offset:64
    s_mov_b64 exec, -1
RP_INITW:
    buffer_load_dword v{vT}, off, s[{DBG}:{DBG+3}], 0 offset:64 sc1''')
    budget(a, EXIT)
    a(f'''s_waitcnt vmcnt(0)
    v_cmp_gt_u32 vcc, 128, v{vT}
    s_cbranch_vccnz RP_INITW
    buffer_load_dword v{vT}, off, s[{DBG}:{DBG+3}], 0 offset:68 sc1
    v_mov_b32 v{vCH}, {LDS_F}
    s_waitcnt vmcnt(0)
    ds_write_b32 v{vCH}, v{vT}
    s_waitcnt lgkmcnt(0)
RP_INITDONE:''')
    sB2C, sAC, sARM = sO1, sO2, sO3
    def p_slots():
        slot(a, sB2C, 0, SH_B2, sP0); slot(a, sAC, 0, SH_A, sP1)
        slot(a, sARM, 3, SH_A, sP1); slot(a, sT0, 3, SH_B2, sP0)
        a(f's_cmp_eq_u32 s{sPW}, 2\ns_cselect_b32 s{sARM}, s{sT0}, s{sARM}')
    p_slots()
    a('s_barrier')
    getmode = lambda t: a(f'v_mov_b32 v{t}, {LDS_F}\nds_read_b32 v{t}, v{t}\ns_waitcnt lgkmcnt(0)\nv_readfirstlane_b32 s{sMODE}, v{t}\ns_nop 3')
    getmode(vT)
    rt(2)
    def p_loop(Z, IN):
        a(f'RP{Z}_LOOP:')
        ts(0)
        nops('b2_nops')
        a(f'RP{Z}_RETRY:')
        ldb2 = lambda k: a(f'buffer_load_dwordx4 {v(AM+4*k,4)}, v{vB2R}, {W}, s{sB2C} offen offset:{k*1024} sc1')
        sms = lambda m, t, k: f'v_smfmac_f32_16x16x64_bf16 {v(acc(m,t),4)}, {v(AM+4*k,4)}, {v(w1(m,t,k),8)}, v{vIDX}'
        sm = lambda m, t, k: a(sms(m, t, k))
        for k in range(4):
            ldb2(k)
            if k < 3:
                for r in range(8): a(f'v_mov_b32 v{ACC+8*k+r}, 0')
                nops('gap', 6)
        def p_cons(k, first):
            return [sms(0,0,k), sms(0,1,k), sms(1,0,k), sms(1,1,k)]
        def p_fail(i): cnt(i); budget(a, EXIT)
        p_rest = gather_fsm(a, f'RPG{Z}', 4, ldb2, lambda k: AM+4*k, p_cons, vCH, vT, f'RPG{Z}_DONE', p_fail, first_ts=lambda: ts(1), last_ts=lambda: ts(2))
        a(f'RPG{Z}_DONE:\nv_max_u32 v{vCH}, v{vCH}, v{vT}\nv_cmp_eq_u32 vcc, -1, v{vCH}')
        def post(m, pk):
            for r in range(4): a(f'v_cvt_pk_bf16_f32 v{pk+r}, v{acc(m,0)+r}, v{acc(m,1)+r}')
            a(f'ds_write_b128 v{vLW}, {v(pk,4)} offset:{LDS_P + m*4096}')
        ts(3)
        post(0, acc(0,0))
        a(f's_cbranch_vccnz RP{Z}_RX')
        sm(2,0,0)
        post(1, acc(1,0))
        ts(4)
        sm(2,1,0); sm(2,0,1); sm(2,1,1)
        a('s_waitcnt lgkmcnt(0)')
        ts(5)
        a('s_barrier')
        RD = ACC
        def rd(off):
            for q in range(2): a(f'ds_read_b128 {v(RD+4*q,4)}, v{vLR} offset:{LDS_P + off + q*1024}')
        def red():
            a(f's_waitcnt lgkmcnt(1)\nv_mfma_f32_16x16x32_bf16 {v(RDD,4)}, {v(SEL,4)}, {v(RD,4)}, 0')
            a(f's_waitcnt lgkmcnt(0)\nv_mfma_f32_16x16x32_bf16 {v(RDD,4)}, {v(SEL,4)}, {v(RD+4,4)}, {v(RDD,4)}')
        rd(0)
        ts(6)
        red()
        sm(2,0,2); sm(2,1,2)
        a('s_nop 1')
        a(f'v_cvt_pk_bf16_f32 v{vT}, v{RDD}, v{RDD+1}\nv_min_u32 v{vT}, -2, v{vT}')
        a(f'buffer_store_dword v{vT}, v{vAT}, {W}, s{sAC} offen{IN}')
        ts(7)
        sm(2,0,3); sm(2,1,3)
        a('s_nop 7')
        post(2, acc(1,0))
        a('s_waitcnt lgkmcnt(0)')
        a('s_barrier')
        ts(8)
        a(f's_cmp_ge_u32 s{sPW}, 2\ns_cbranch_scc1 RP{Z}_NOV')
        rd(8192); red()
        a('s_nop 7')
        a(f'v_cvt_pk_bf16_f32 v{vT}, v{RDD}, v{RDD+1}\nv_min_u32 v{vT}, -2, v{vT}')
        a(f'buffer_store_dword v{vT}, v{vAV}, {W}, s{sAC} offen{IN}')
        ts(9)
        sleep('w2_delay_v', 2)
        a(f's_branch RP{Z}_W2\nRP{Z}_NOV:')
        sleep('w2_delay', 4)
        a(f'RP{Z}_W2:')
        if TL: a(f's_mov_b32 m0, s{sSTEP}\nv_writelane_b32 v{vFR}, s{sST}, m0')
        a(f's_add_u32 s{sSTEP}, s{sSTEP}, 1\ns_cmp_ge_u32 s{sSTEP}, {NSTEP}\ns_cbranch_scc1 RP_END')
        ts(10)
        NW2 = opt.get('nw2', 9); NW2B = opt.get('nw2b', 2); PACE = opt.get('pace', 2)
        if not opt.get('nopf'): stage(0, NW2, PACE)
        a(f's_cmp_eq_u32 s{sPW}, 0\ns_cbranch_scc1 RP{Z}_NOARM')
        a(f'buffer_store_dwordx4 {SEN}, v{vARM}, {W}, s{sARM} offen{IN}')
        a(f'RP{Z}_NOARM:')
        ts(11)
        if opt.get('warm', True):
            a(f's_cmp_ge_u32 s{sSTEP}, {NSTEP-WA+1}\ns_cbranch_scc1 RP{Z}_NOWARM')
            for q in range(8): a(f's_load_dword s{sJ}, s[{sWARM}:{sWARM+1}], {q*128}')
            a(f's_add_u32 s{sWARM}, s{sWARM}, {32*16384}\ns_addc_u32 s{sWARM+1}, s{sWARM+1}, 0\nRP{Z}_NOWARM:')
        p_slots()
        a('s_barrier')
        if NW2 < 16 and not opt.get('nopf'):
            stage(NW2, NW2+NW2B, PACE)
            sleep('w3_delay', 9)
            ts(12)
            stage(NW2+NW2B, 16, opt.get('pace3', 1))
        a(f's_add_u32 s{sKV}, s{sKV}, {32*16384}')
        a('s_waitcnt vmcnt(0) lgkmcnt(0)')
        ts(13)
        a('s_barrier')
        tl_dump(f'RP{Z}_TL', vT)
        a(f's_branch RP{Z}_LOOP')
        a(f'RP{Z}_RX:'); budget(a, EXIT)
        a(f's_waitcnt vmcnt(0) lgkmcnt(0)\ns_nop 4\ns_branch RP{Z}_RETRY')
        p_rest()
    if DUAL:
        a(f's_cmp_lg_u32 s{sMODE}, 0\ns_cbranch_scc1 RPs_LOOP')
        p_loop('f', ''); p_loop('s', ' sc1')
    else: p_loop('', LIN)
    a('RP_END:')
    rt(3)
    if TL:
        a(f's_lshl_b32 s{sT0}, s{sRHO}, 2\ns_add_u32 s{sT0}, s{sT0}, s{sPW}\ns_lshl_b32 s{sT0}, s{sT0}, 8\ns_add_u32 s{sT0}, s{sT0}, {STAMP_BASE + 512*1024}')
        a(f'v_lshlrev_b32 v{vT}, 2, v0\nbuffer_store_dword v{vFR}, v{vT}, {W}, s{sT0} offen')
    if TL: dump(2*NST, 12, 1, 16, vT)
    a(f's_branch {EXIT}')

    a.c('================ attention waves ================')
    a('R_ATTN:')
    if opt.get('prio'): a('s_setprio 3')
    sAW = sW
    vIDX, vTR, vVR, vB1W, vOW, vOR, vCH, vT, vM, vM2, vB1R, vB2W, vKVL = range(1, 14)
    OA, LD, OD, WD, PM, PX, ONES, CM, S, T = 14, 46, 50, 66, 70, 76, 80, 88, 92, 104
    KX, VX, VM, WO = 120, 152, 184, 192
    vG, vI, vT2 = OA, OA+1, OA+2
    OP = OA + 2
    vMP = vM2; assert vMP % 2 == 0
    a(f'''v_and_b32 v{vI}, 15, v0
    v_lshrrev_b32 v{vG}, 4, v0
    v_mov_b32 v{vIDX}, 0x88884444
    v_mov_b32 v{vT}, 0xddddeeee
    v_cmp_lt_u32 vcc, 7, v{vI}
    s_nop 1
    v_cndmask_b32 v{vIDX}, v{vIDX}, v{vT}, vcc''')
    a(f'''s_load_dwordx2 s[4:5], s[0:1], 40
    v_lshrrev_b32 v{vT}, 1, v{vG}
    v_lshlrev_b32 v{vT}, 3, v{vT}
    v_and_b32 v{vT2}, 1, v{vG}
    v_add_u32 v{vT}, v{vT}, v{vT2}
    v_lshlrev_b32 v{vT}, 11, v{vT}
    v_lshl_add_u32 v{vT}, v{vI}, 2, v{vT}
    s_lshl_b32 s{sT0}, s{sGQ}, 20
    s_lshl_b32 s{sT1}, s{sI16}, 7
    s_add_u32 s{sT0}, s{sT0}, s{sT1}
    s_lshr_b32 s{sT1}, s{sAW}, 1
    s_lshl_b32 s{sT1}, s{sT1}, 6
    s_add_u32 s{sT0}, s{sT0}, s{sT1}
    v_add_u32 v{vT}, s{sT0}, v{vT}
    s_waitcnt lgkmcnt(0)''')
    srd(a, TS, 4, 8*MB)
    for ks in range(8):
        for b in range(8):
            row = 64*ks + 32*(b&1) + 16*(b>>2) + 4*((b>>1)&1)
            a(f's_mov_b32 s{sT0}, {row*2048}\ns_mov_b32 s{sT1}, {(row+2)*2048}')
            a(f'buffer_load_dword v{WO+ks*8+b}, v{vT}, s[{TS}:{TS+3}], s{sT0} offen')
            a(f'buffer_load_dword v{KX+ks*8+b}, v{vT}, s[{TS}:{TS+3}], s{sT1} offen')
        a('s_waitcnt vmcnt(44)')
    a(f'''s_lshl_b32 s{sT0}, s{sGQ}, 2
    s_add_u32 s{sT0}, s{sT0}, s{sAW}
    s_lshl_b32 s{sT0}, s{sT0}, 14
    v_lshl_add_u32 v{vTR}, v0, 4, s{sT0}
    v_and_b32 v{vT2}, 1, v{vG}
    v_lshlrev_b32 v{vVR}, 9, v{vT2}
    v_lshrrev_b32 v{vT2}, 1, v{vG}
    v_lshl_add_u32 v{vVR}, v{vT2}, 8, v{vVR}
    v_lshl_add_u32 v{vVR}, v{vI}, 4, v{vVR}
    s_add_u32 s{sT0}, s{sT0}, 4096
    v_add_u32 v{vVR}, s{sT0}, v{vVR}
    s_lshl_b32 s{sT0}, s{sAW}, 14
    s_add_u32 s{sT0}, s{sT0}, {LDS_KV}
    v_lshl_add_u32 v{vKVL}, v0, 4, s{sT0}''')
    a(f'''s_lshl_b32 s{sT0}, s{sI16}, 14
    s_lshl_b32 s{sT1}, s{sGQ}, 8
    s_add_u32 s{sT0}, s{sT0}, s{sT1}
    s_lshl_b32 s{sT1}, s{sAW}, 11
    s_add_u32 s{sT0}, s{sT0}, s{sT1}
    v_lshl_add_u32 v{vB1W}, v0, 2, s{sT0}
    s_lshr_b32 s{sT0}, s{sC}, 1
    s_lshl_b32 s{sT0}, s{sT0}, 14
    s_and_b32 s{sT1}, s{sC}, 1
    s_lshl_b32 s{sT1}, s{sT1}, 12
    s_add_u32 s{sT0}, s{sT0}, s{sT1}
    v_lshl_add_u32 v{vB1R}, v0, 4, s{sT0}''')
    a(f'''v_bfe_u32 v{vT2}, v0, 2, 1
    v_lshlrev_b32 v{vB2W}, 6, v{vT2}
    v_bfe_u32 v{vT2}, v0, 3, 1
    v_lshl_add_u32 v{vB2W}, v{vT2}, 4, v{vB2W}
    v_bfe_u32 v{vT2}, v0, 5, 1
    v_lshl_add_u32 v{vB2W}, v{vT2}, 5, v{vB2W}
    v_bfe_u32 v{vT2}, v0, 4, 1
    v_lshl_add_u32 v{vB2W}, v{vT2}, 3, v{vB2W}
    v_and_b32 v{vT2}, 3, v0
    v_lshl_add_u32 v{vB2W}, v{vT2}, 7, v{vB2W}
    s_lshl_b32 s{sT0}, s{sGQ}, 14
    s_lshl_b32 s{sT1}, s{sI16}, 9
    s_add_u32 s{sT0}, s{sT0}, s{sT1}
    s_add_u32 s{sT0}, s{sT0}, {MB}
    v_add_u32 v{vB2W}, s{sT0}, v{vB2W}''')
    a(f'''v_lshrrev_b32 v{vT2}, 1, v{vG}
    v_lshlrev_b32 v{vOW}, 9, v{vT2}
    v_lshl_add_u32 v{vOW}, v{vI}, 5, v{vOW}
    v_and_b32 v{vT2}, 1, v{vG}
    v_lshl_add_u32 v{vOW}, v{vT2}, 4, v{vOW}
    s_lshl_b32 s{sT0}, s{sAW}, 11
    s_add_u32 s{sT0}, s{sT0}, {LDS_O}
    v_add_u32 v{vOW}, s{sT0}, v{vOW}''')
    a(f'''v_lshrrev_b32 v{vOR}, 2, v0
    v_lshlrev_b32 v{vOR}, 5, v{vOR}
    v_and_b32 v{vT2}, 1, v0
    v_lshl_add_u32 v{vOR}, v{vT2}, 4, v{vOR}
    v_bfe_u32 v{vT2}, v0, 1, 1
    v_lshl_add_u32 v{vOR}, v{vT2}, 3, v{vOR}
    v_add_u32 v{vOR}, {LDS_O}, v{vOR}''')
    a(f'v_mov_b32 v{vT2}, 0xff800000\nv_cmp_gt_u32 vcc, 32, v0\ns_nop 1')
    for r in range(4): a(f'v_cndmask_b32 v{CM+r}, 0, v{vT2}, vcc')
    for r in range(8): a(f'v_mov_b32 v{ONES+r}, 0x3f803f80')
    for r in range(6): a(f'v_mov_b32 v{PM+r}, 0')
    a(f'''v_and_b32 v{vT2}, 4, v{vI}
    v_and_b32 v{vCH}, 1, v{vI}
    v_lshl_add_u32 v{vT2}, v{vCH}, 1, v{vT2}
    v_lshrrev_b32 v{vCH}, 3, v{vI}
    v_add_u32 v{vT2}, v{vT2}, v{vCH}
    v_and_b32 v{vCH}, 2, v{vI}
    v_lshl_add_u32 v0, v{vCH}, 2, v{vT2}''')
    a(f's_and_b32 s{sT0}, s{sAW}, 1\ns_cselect_b32 s{sT2}, s{sSELHI}, s{sSELLO}')
    a(f'v_mov_b32 v{vM}, -1')
    FRESH = opt.get('fresh', False)
    for sl in range(64 if FRESH else 4):
        if FRESH: a(f's_xor_b32 s{sT0}, s{sP0}, {((sl >> 3) & 1) << 13}\ns_add_u32 s{sT0}, s{sT0}, {96*MB + (sl << SH_B1)}')
        else: a(f's_add_u32 s{sT0}, s{sP0}, {sl << SH_B1}')
        a(f'buffer_store_dword v{vM}, v{vB1W}, {W}, s{sT0} offen sc1')
        if sl % 16 == 15: a('s_waitcnt vmcnt(30)')
    a('s_waitcnt vmcnt(0)')
    for r in range(64): a(f'v_perm_b32 v{WO+r}, v{KX+r}, v{WO+r}, s{sT2}')
    a(f's_mov_b32 s{sKVM}, {KVM_BASE}')
    a('s_barrier\ns_barrier')
    getmode(vT)
    sAC, sB1C, sB1A, sB2N = sO1, sO2, sO3, sO4
    def a_loop(Z, IN):
        a(f'RA{Z}_LOOP:')
        for q in range(16):
            a(f'ds_read_b128 {v(KX+4*q,4)}, v{vKVL} offset:{q*1024}')
            if q == 8: a('s_waitcnt lgkmcnt(4)')
        slot(a, sAC, 0, SH_A, sP1); slot(a, sB1C, 0, SH_B1, sP0); slot(a, sB1A, 2, SH_B1, sP0); slot(a, sB2N, 1, SH_B2, sP0)
        if FRESH:
            a(f's_lshl_b32 s{sT0}, s{sSTEP}, 10\ns_and_b32 s{sT0}, s{sT0}, 0x2000\ns_xor_b32 s{sT0}, s{sT0}, s{sP0}\ns_lshl_b32 s{sB1C}, s{sSTEP}, {SH_B1}\ns_add_u32 s{sB1C}, s{sB1C}, s{sT0}\ns_add_u32 s{sB1C}, s{sB1C}, {96*MB}')
        a('s_waitcnt lgkmcnt(0)')
        a('s_barrier')
        ts(0)
        nops('a_nops', 48)
        ldt = lambda k: a(f'buffer_load_dwordx4 {v(T+4*k,4)}, v{vTR}, {W}, s{sAC} offen offset:{k*1024} sc1')
        ldv = lambda k: a(f'buffer_load_dwordx4 {v(VM+4*k,4)}, v{vVR}, {W}, s{sAC} offen offset:{k*1024} sc1')
        for k in range(4):
            ldt(k)
            if k < 3:
                for r in range(8): a(f'v_mov_b32 v{LD+8*k+r}, 0')
                nops('gap', 6)
        a('s_barrier')
        def t_cons(k, first):
            tk = v(T+4*k,4)
            m = [f'v_mfma_f32_16x16x32_bf16 {v(S,4)}, {tk}, {tk}, {v(CM,4) if first else v(S,4)}']
            for t in range(2):
                d = v(S+4+4*t,4)
                m.append(f'v_mfma_f32_16x16x32_bf16 {d}, {v(KX+(t*4+k)*4,4)}, {tk}, {"0" if first else d}')
            return m
        def t_fail(i): cnt(i); budget(a, EXIT)
        t_rest = gather_fsm(a, f'RAG{Z}', 4, ldt, lambda k: T+4*k, t_cons, vCH, vT, f'RAG{Z}_DONE', t_fail, first_ts=lambda: ts(1), last_ts=lambda: ts(2))
        a(f'RAG{Z}_DONE:\nv_max_u32 v{vCH}, v{vCH}, v{vT}')
        ldv(0)
        a(f'v_max3_f32 v{vM}, v{S}, v{S+1}, v{S+2}')
        a(f'v_cmp_eq_u32 vcc, -1, v{vCH}')
        ldv(1)
        ts(3)
        a(f'v_max3_f32 v{vM2}, v{S+3}, v{S+4}, v{S+5}')
        a(f'v_max3_f32 v{vM}, v{vM}, v{S+6}, v{S+7}')
        a(f's_cbranch_vccnz RA{Z}_RX')
        a(f's_cmp_ge_u32 s{sSTEP}, {NSTEP-1}')
        a(f'v_max3_f32 v{vM2}, v{vM2}, v{S+8}, v{S+9}')
        a(f'v_max3_f32 v{vM}, v{vM}, v{S+10}, v{S+11}')
        a(f'v_max_f32 v{vT}, v{vM}, v{vM2}')
        a(f'''v_max_f32 v{vM}, v{vM}, v{vM2}
        s_cbranch_scc1 RA{Z}_FINAL
        s_nop 0
        v_permlane32_swap_b32 v{vM}, v{vT}
        v_max_f32 v{vM2}, v{vM}, v{vT}
        v_max_f32 v{vM}, v{vM}, v{vT}
        s_nop 1
        v_permlane16_swap_b32 v{vM}, v{vM2}
        v_max_f32 v{vM}, v{vM}, v{vM2}
        v_mul_f32 v{vMP}, s{sSC+1}, v{vM}''')
        ts(4)
        for r in range(0, 12, 2): a(f'v_pk_fma_f32 {v(S+r,2)}, {v(S+r,2)}, s[{sSC}:{sSC+1}], {v(vMP,2)} op_sel_hi:[1,0,0]')
        for r in range(12): a(f'v_exp_f32 v{S+r}, v{S+r}')
        a(f'v_cvt_pk_bf16_f32 v{PM+2}, v{S}, v{S+1}\nv_cvt_pk_bf16_f32 v{PM+3}, v{S+2}, v{S+3}')
        for r in range(4): a(f'v_cvt_pk_bf16_f32 v{PX+r}, v{S+4+2*r}, v{S+5+2*r}')
        dpp = lambda r: a(f'v_mov_b32_dpp v{r}, v{r} row_shr:8 row_mask:0xf bank_mask:0xc')
        dpp(PM+2); dpp(PM+3)
        for r in range(4): dpp(PX+r)
        ts(5)
        smx = lambda d, A, B: a(f'v_smfmac_f32_16x16x64_bf16 {v(d,4)}, {v(A,4)}, {v(B,8)}, v{vIDX} abid:1')
        a(f'RA{Z}_PV:')
        smx(LD, PM+2, ONES)
        a('s_waitcnt vmcnt(0)')
        smx(LD, PX, ONES)
        a(f'v_max3_u32 v{vCH}, v{VM}, v{VM+1}, v{VM+2}\nv_max3_u32 v{vT}, v{VM+3}, v{VM+4}, v{VM+5}')
        smx(OD, PX, VX)
        a(f'v_max3_u32 v{vCH}, v{vCH}, v{VM+6}, v{VM+7}')
        smx(OD, PM+2, VM-4)
        a(f'v_max_u32 v{vCH}, v{vCH}, v{vT}')
        a(f'v_rcp_f32 v{LD}, v{LD}')
        smx(OD+4, PX, VX+8)
        a(f'v_cmp_eq_u32 vcc, -1, v{vCH}')
        a(f'v_rcp_f32 v{LD+1}, v{LD+1}')
        smx(OD+4, PM, VM-4)
        a(f's_cbranch_vccnz RA{Z}_RV')
        a(f'v_rcp_f32 v{LD+2}, v{LD+2}')
        smx(OD+8, PX, VX+16)
        a(f'v_rcp_f32 v{LD+3}, v{LD+3}')
        smx(OD+8, PM+2, VM)
        ts(6)
        PK = opt.get('pkmul', True)
        def scale(n):
            if PK:
                for h in range(2): a(f'v_pk_mul_f32 {v(OD+4*n+2*h,2)}, {v(OD+4*n+2*h,2)}, {v(LD+2*h,2)}')
            else:
                for r in range(4): a(f'v_mul_f32 v{OD+4*n+r}, v{OD+4*n+r}, v{LD+r}')
        def pack(n):
            a(f'v_cvt_pk_bf16_f32 v{OP+2*n}, v{OD+4*n}, v{OD+4*n+1}\nv_cvt_pk_bf16_f32 v{OP+2*n+1}, v{OD+4*n+2}, v{OD+4*n+3}')
        wr = lambda n: a(f'ds_write_b64 v{vOW}, {v(OP+2*n,2)} offset:{(n>>1)*1024 + (n&1)*8}')
        scale(0)
        smx(OD+12, PX, VX+24)
        pack(0)
        smx(OD+12, PM, VM)
        wr(0); scale(1)
        pack(1); wr(1)
        scale(2); pack(2); wr(2)
        scale(3); pack(3); wr(3)
        ts(7)
        a('s_waitcnt lgkmcnt(0)')
        ts(8)
        a('s_barrier')
        def rdo(ks):
            for rd_ in range(2):
                a(f'ds_read_b64_tr_b16 {v(OA+4*ks+2*rd_,2)}, v{vOR} offset:{ks*1024+rd_*512}')
        for ks in range(4): rdo(ks)
        ts(9)
        for ks in range(8):
            a(f's_waitcnt lgkmcnt({6 if ks <= 4 else 14-2*ks})')
            a(f'v_smfmac_f32_16x16x64_bf16 {v(WD,4)}, {v(OA+4*ks,4)}, {v(WO+8*ks,8)}, v{vIDX}')
            if ks < 4: rdo(4+ks)
        ts(10)
        a(f'v_mov_b32 v{vM}, -1\ns_nop 6')
        a(f'''v_permlane32_swap_b32 v{WD}, v{WD+1}
        v_permlane32_swap_b32 v{WD+2}, v{WD+3}
        v_add_f32 v{WD}, v{WD}, v{WD+1}
        v_add_f32 v{WD+2}, v{WD+2}, v{WD+3}
        v_cvt_pk_bf16_f32 v{WD}, v{WD}, v{WD+2}
        v_min_u32 v{WD}, -2, v{WD}
        buffer_store_dword v{WD}, v{vB1W}, {W}, s{sB1C} offen sc1''')
        ts(11)
        ARM = f'buffer_store_dword v{vM}, v{vB1W}, {W}, s{sB1A} offen sc1'
        if opt.get('arm_at', 0) == 0 and not FRESH:
            nops('arm_nops', 8); a(ARM)
        def copies(tag):
            if opt.get('nocopy'): return
            a(f's_cmp_ge_u32 s{sI16}, 6\ns_cbranch_scc1 RA{Z}_C{tag}5')
            for p in range(6):
                a(f's_cmp_eq_u32 s{sI16}, {p}\ns_cbranch_scc0 RA{Z}_C{tag}{p}')
                if p < 4: a(f'buffer_store_dwordx4 {v(T+4*p,4)}, v{vTR}, {W}, s{sKVM} offen offset:{p*1024} sc1')
                else: a(f'buffer_store_dwordx4 {v(VM+4*(p-4),4)}, v{vVR}, {W}, s{sKVM} offen offset:{(p-4)*1024} sc1')
                a(f'RA{Z}_C{tag}{p}:')
            a(f's_add_u32 s{sKVM}, s{sKVM}, {32*UNIT}')
        copies('a')
        a(f's_add_u32 s{sSTEP}, s{sSTEP}, 1')
        a(f's_cmp_lg_u32 s{sAW}, 0\ns_cbranch_scc1 RA{Z}_NOB1')
        SEL = S
        make_sel(a, SEL, 0, vT, vCH)
        sleep('b1_delay', 3)
        nops('b1_nops')
        BD = OA + 2
        D0, D1 = S+4, S+8
        a(f'RA{Z}_B1:')
        ldb1 = lambda q: a(f'buffer_load_dwordx4 {v(BD+4*q,4)}, v{vB1R}, {W}, s{sB1C} offen offset:{q*1024} sc1')
        for q in range(4): ldb1(q)
        for r in range(8): a(f'v_mov_b32 v{D0+r}, 0')
        ts(12)
        def b_cons(q, first):
            d = v(D0 if q < 2 else D1, 4)
            return [f'v_mfma_f32_16x16x32_bf16 {d}, {v(SEL,4)}, {v(BD+4*q,4)}, {d}']
        def b_fail(i): cnt(6+i); budget(a, EXIT)
        b_rest = gather_fsm(a, f'RBG{Z}', 4, ldb1, lambda q: BD+4*q, b_cons, vCH, vT, f'RBG{Z}_DONE', b_fail, first_ts=lambda: ts(13), last_ts=lambda: ts(14))
        a(f'RBG{Z}_DONE:\nv_max_u32 v{vCH}, v{vCH}, v{vT}\nv_cmp_eq_u32 vcc, -1, v{vCH}\ns_cbranch_vccnz RA{Z}_Y\ns_nop 4')
        for r in range(2): a(f'v_cvt_pk_bf16_f32 v{PX+r}, v{D0+r}, v{D1+r}')
        for r in range(2): a(f'v_min_u32 v{PX+r}, -2, v{PX+r}')
        a(f'buffer_store_dwordx2 {v(PX,2)}, v{vB2W}, {W}, s{sB2N} offen{IN}')
        ts(15)
        a(f'RA{Z}_NOB1:')
        a('s_barrier')
        if opt.get('arm_at', 0) == 1:
            sleep('arm_sleep', 8); a(ARM)
        tl_dump(f'RA{Z}_TL', vT)
        a(f's_branch RA{Z}_LOOP')
        a(f'RA{Z}_RX:'); budget(a, EXIT)
        a('s_waitcnt vmcnt(0)')
        for k in range(4): ldt(k)
        a(f's_branch RAG{Z}_S0123')
        t_rest(); b_rest()
        a(f'RA{Z}_RV:'); budget(a, EXIT); cnt(5)
        ldv(0); ldv(1)
        a('s_nop 4')
        for r in range(12): a(f'v_mov_b32 v{LD+r}, 0')
        a(f's_nop 1\ns_branch RA{Z}_PV')
        a(f'RA{Z}_Y:'); budget(a, EXIT)
        a(f's_waitcnt vmcnt(0)\ns_nop 4\ns_branch RA{Z}_B1')
        a(f'RA{Z}_FINAL:\ns_waitcnt vmcnt(0)')
        a(f'v_max3_u32 v{vCH}, v{VM}, v{VM+1}, v{VM+2}\nv_max3_u32 v{vT}, v{VM+3}, v{VM+4}, v{VM+5}')
        a(f'v_max3_u32 v{vCH}, v{vCH}, v{VM+6}, v{VM+7}\nv_max_u32 v{vCH}, v{vCH}, v{vT}')
        a(f'v_cmp_eq_u32 vcc, -1, v{vCH}\ns_cbranch_vccnz RA{Z}_RFV')
        copies('b')
        a('s_waitcnt vmcnt(0)')
        if TL: dump(2*NST, 12, 1, 16, vT)
        a(f's_branch {EXIT}')
        a(f'RA{Z}_RFV:'); budget(a, EXIT)
        ldv(0); ldv(1)
        a(f's_branch RA{Z}_FINAL')
    if DUAL:
        a(f's_cmp_lg_u32 s{sMODE}, 0\ns_cbranch_scc1 RAs_LOOP')
        a_loop('f', ''); a_loop('s', ' sc1')
    else: a_loop('', LIN)
```

```python
from asmlib import *
from layout import *
from gemm import G
from rec import *

POL_BASE = G_BASE + 32768

def common_entry(a, nwg, exit_lbl, split=True):
    a(f'''s_cmp_ge_u32 s2, {nwg}
    s_cbranch_scc1 {exit_lbl}
    s_load_dwordx4 s[4:7], s[0:1], 96
    s_waitcnt lgkmcnt(0)''')
    srd(a, DBG, 4, 256); srd(a, WS, 6, WS_SIZE)
    a(f's_mov_b32 s{sWSB}, s6\ns_mov_b32 s{sWSB+1}, s7')
    if split:
        a(f'v_lshrrev_b32 v1, 6, v0\nv_and_b32 v0, 63, v0\ns_nop 0\nv_readfirstlane_b32 s{G.sWv}, v1\ns_nop 3')

def ticket(a, exit_lbl):
    D = f's[{DBG}:{DBG+3}]'
    a(f'''s_getreg_b32 s3, hwreg(HW_REG_XCC_ID)
    s_and_b32 s3, s3, 7
    s_mov_b32 s{sBUD}, 4000000
    v_cmp_eq_u32 vcc, 0, v0
    s_and_saveexec_b64 s[4:5], vcc
    s_cbranch_execz TK_W
    v_mov_b32 v1, 1
    v_mov_b32 v2, 1
    s_lshl_b32 s{sT0}, s3, 2
    buffer_atomic_add v1, off, {D}, s{sT0} sc0
    s_waitcnt vmcnt(0)
    buffer_atomic_add v2, off, {D}, 0 offset:32
    v_readfirstlane_b32 s{sT1}, v1
    s_lshl_b32 s{sT0}, s3, 5
    s_nop 2
    s_add_u32 s{sRHO}, s{sT0}, s{sT1}
    s_cmp_lt_u32 s{sT1}, 32
    s_cbranch_scc1 TK_HAVE
    buffer_atomic_add v2, off, {D}, 0 offset:68
    v_mov_b32 v1, 1
    buffer_atomic_add v1, off, {D}, 0 offset:36 sc0
TK_ALL:
    buffer_load_dword v3, off, {D}, 0 offset:32 sc1
    s_sub_u32 s{sBUD}, s{sBUD}, 1
    s_cbranch_scc1 {exit_lbl}
    s_waitcnt vmcnt(0)
    v_cmp_gt_u32 vcc, 0x100, v3
    s_cbranch_vccnz TK_ALL
    buffer_load_dwordx4 v[4:7], off, {D}, 0 sc1
    buffer_load_dwordx4 v[8:11], off, {D}, 0 offset:16 sc1
    v_readfirstlane_b32 s{sT1}, v1
    s_waitcnt vmcnt(0)''')
    for x in range(8):
        a(f'''v_readfirstlane_b32 s{sT0}, v{4+x}
        s_nop 3
        s_min_u32 s{sT0}, s{sT0}, 32
        s_add_u32 s{sRHO}, s{sT0}, s{sT1}
        s_sub_u32 s{sT1}, s{sRHO}, 32
        s_add_u32 s{sRHO}, s{sRHO}, {32*x}
        s_cmp_lt_i32 s{sT1}, 0
        s_cbranch_scc1 TK_HAVE''')
    a(f'''TK_HAVE:
    v_mov_b32 v1, s{sRHO}
    v_mov_b32 v2, 0
    s_waitcnt vmcnt(0)
    ds_write_b32 v2, v1
TK_W:
    s_mov_b64 exec, s[4:5]
    s_waitcnt lgkmcnt(0)
    s_barrier
    v_mov_b32 v2, 0
    ds_read_b32 v1, v2
    s_waitcnt lgkmcnt(0)
    v_readfirstlane_b32 s{sRHO}, v1
    s_barrier
    s_and_b32 s{sRHO}, s{sRHO}, 255''')

def probe(a, tag):
    Wd = f's[{WS}:{WS+3}]'
    a(f's_getreg_b32 s3, hwreg(HW_REG_XCC_ID)\ns_and_b32 s3, s3, 4\nv_mov_b32 v1, 0')
    for pg, base in enumerate((MSG0, MSG1)):
        a('s_mov_b32 s90, -1\ns_mov_b32 s91, -1')
        for rep in range(3):
            for h in range(2):
                a(f'''s_mov_b32 s89, {base + h*8192 + rep*512}
                s_memtime s[92:93]
                s_waitcnt lgkmcnt(0)
                buffer_store_dword v1, off, {Wd}, s89 sc1
                s_waitcnt vmcnt(0)
                buffer_load_dword v2, off, {Wd}, s89 sc1
                s_waitcnt vmcnt(0)
                s_memtime s[94:95]
                s_waitcnt lgkmcnt(0)
                s_sub_u32 s92, s94, s92
                s_min_u32 s{90+h}, s{90+h}, s92''')
        a(f'''s_cmp_lt_u32 s91, s90
        s_cselect_b32 s89, 4, 0
        s_xor_b32 s89, s89, s3
        s_lshl_b32 s89, s89, 11
        s_add_u32 s89, s89, {base}
        v_mov_b32 v{4+pg}, s89''')
```

```python
import sys, json
from asmlib import *
from layout import *
from gemm import *
from gemm1 import *
from misc import *
from roles import *
import rec

HEAD = open('gated_mix__memory_aug_recurrent_mem_tr__spectral_gfnet__prompt.s.ref').read().split('; Override launch')[0]

def build(opt, path):
    ks = []
    a = Asm(); common_entry(a, 256, 'P_EXIT')
    a(f's_mov_b32 s{sTK}, s2')
    a(f's_cmp_lg_u32 s2, 255\ns_cbranch_scc1 P_NOPROBE\ns_cmp_lg_u32 s{G.sWv}, 0\ns_cbranch_scc1 P_PW')
    probe(a, 'PB')
    a(f's_mov_b32 s89, {POL_BASE}\nbuffer_store_dwordx2 v[4:5], off, {W}, s89\nP_PW:\ns_barrier\nP_NOPROBE:')
    gen_prep(a, 'P')
    a(f's_cmp_ge_u32 s{sTK}, 64\ns_cbranch_scc1 P_EXIT')
    gen_wt(a, 'PW')
    a('P_EXIT:\ns_endpgm'); ks.append(('prep_kernel', a, 256, 69632))
    a = Asm(); common_entry(a, 416, 'G1_EXIT')
    a(f's_and_b32 s{sRB}, s2, 7\ns_lshr_b32 s{sCB}, s2, 3\ns_lshr_b32 s{sTY}, s{sCB}, 4\ns_and_b32 s{sCB}, s{sCB}, 15')
    gen_gemm1(a, 'G1', 256, 'G1_EXIT')
    a('G1_EXIT:\ns_endpgm'); ks.append(('gemm1_kernel', a, 416, 131072))
    a = Asm(); common_entry(a, 256, 'R_EXIT', split=False)
    a(f's_add_u32 s4, s6, {POL_BASE}\ns_addc_u32 s5, s7, 0\ns_load_dwordx2 s[{sP0}:{sP1}], s[4:5], 0\ns_waitcnt lgkmcnt(0)')
    ticket(a, 'R_EXIT')
    a(f's_cmp_lt_u32 s{sRHO}, 128\ns_cbranch_scc1 R_GO')
    a(f's_sub_u32 s{sTK}, s{sRHO}, 128\ns_cmp_ge_u32 s{sTK}, 64\ns_cbranch_scc1 R_EXIT')
    a(f'v_lshrrev_b32 v1, 6, v0\nv_and_b32 v0, 63, v0\ns_nop 0\nv_readfirstlane_b32 s{G.sWv}, v1\ns_nop 3')
    gen_fft_tables(a); gen_fft(a, 'FF')
    a('s_branch R_EXIT\nR_GO:')
    o = dict(opt); o['exit'] = 'R_EXIT'
    rec.gen_rec(a, o)
    a('R_EXIT:\ns_endpgm'); ks.append(('rec_kernel', a, 256, 131072))
    a = Asm(); common_entry(a, 256, 'A_EXIT')
    gen_attn_setup(a)
    a(f's_lshl_b32 s{sU0}, s2, 3\ns_add_u32 s{sU0}, s{sU0}, s{G.sWv}')
    gen_attn(a)
    a('A_EXIT:\ns_endpgm'); ks.append(('attn_kernel', a, 256, 0))
    a = Asm(); common_entry(a, 64, 'G2_EXIT')
    a(f's_and_b32 s{sRB}, s2, 7\ns_lshr_b32 s{sCB}, s2, 3')
    gen_gemm2(a, 'G2', 128)
    a('G2_EXIT:\ns_endpgm'); ks.append(('gemm2_kernel', a, 64, 131072))
    txt = HEAD
    for n, _, g, lds in ks: txt += f'; @launch kernel={n} grid=({g},1,1) block=(512,1,1) lds={lds}\n'
    txt += '.amdgcn_target "amdgcn-amd-amdhsa--gfx950"\n.text\n'
    for n, a, _, _ in ks: txt += kernel_header(n) + a.text()
    txt += '.section .rodata,"a"\n'
    for n, *_ in ks: txt += kernel_desc(n)
    open(path, 'w').write(txt)

if __name__ == '__main__':
    build(json.loads(sys.argv[1]), sys.argv[2])
```

```python
from asmlib import *

class G:
    TRACE = False
    FAKE16 = False
    XS = 60; WSR = 64
    sXo, sWo, sCnt, sM0, sA, sB, sWX, sWW = 68, 69, 70, 71, 72, 73, 74, 75
    sWv = 76
    vL = 0
    vXD, vWD = 1, 2
    vXR = 4
    vWR = 8
    vT = 12
    FR = 24
    ACC = 128

def gemm_setup(a, BN, WM, WN, xmode, xstride, wstride, featperm, wrow=None):
    g = G; T = g.vT
    MT, NT = 256 // WM // 32, BN // WN // 32
    XB = 32768
    lg = {1: 0, 2: 1, 4: 2, 8: 3}[WN]
    a(f's_lshr_b32 s{g.sA}, s{g.sWv}, {lg}\ns_and_b32 s{g.sB}, s{g.sWv}, {WN-1}')
    if xmode == 'row':
        a(f'''v_lshrrev_b32 v{T}, 3, v0
        s_lshl_b32 s{g.sM0}, s{g.sWv}, 3
        v_add_u32 v{T}, s{g.sM0}, v{T}
        v_lshrrev_b32 v{T+1}, 1, v{T}
        v_xor_b32 v{T+1}, v{T+1}, v0
        v_and_b32 v{T+1}, 7, v{T+1}
        s_mov_b32 s{g.sM0}, {xstride}
        v_mul_lo_u32 v{g.vXD}, v{T}, s{g.sM0}
        v_lshl_add_u32 v{g.vXD}, v{T+1}, 4, v{g.vXD}''')
        a(f'''v_and_b32 v{T}, 31, v0
        v_lshrrev_b32 v{T+1}, 1, v{T}
        v_lshrrev_b32 v{T+2}, 5, v0
        v_xor_b32 v{T+1}, v{T+1}, v{T+2}
        v_and_b32 v{T+1}, 7, v{T+1}
        v_lshlrev_b32 v{T+1}, 4, v{T+1}
        v_lshl_add_u32 v{T}, v{T}, 7, v{T+1}
        s_mul_i32 s{g.sM0}, s{g.sA}, {MT*4096}
        v_add_u32 v{g.vXR}, s{g.sM0}, v{T}''')
        for ks in range(1, 4): a(f'v_xor_b32 v{g.vXR+ks}, {ks << 5}, v{g.vXR}')
    else:
        a(f'''s_lshr_b32 s{g.sM0}, s{g.sWv}, 2
        s_mul_i32 s{g.sM0}, s{g.sM0}, {xstride}
        s_and_b32 s{g.sCnt}, s{g.sWv}, 3
        s_lshl_b32 s{g.sCnt}, s{g.sCnt}, 10
        s_add_u32 s{g.sM0}, s{g.sM0}, s{g.sCnt}
        v_lshl_add_u32 v{g.vXD}, v0, 4, s{g.sM0}''')
        a(f'''v_and_b32 v{T}, 31, v0
        v_lshrrev_b32 v{T+2}, 5, v0
        v_lshlrev_b32 v{T+2}, 12, v{T+2}
        v_lshl_add_u32 v{T}, v{T}, 4, v{T+2}
        s_mul_i32 s{g.sM0}, s{g.sA}, {MT*512}
        v_add_u32 v{g.vXR}, s{g.sM0}, v{T}''')
        for ks in range(1, 4): a(f'v_add_u32 v{g.vXR+ks}, {ks << 13}, v{g.vXR}')
    RPI = 512 // BN; lpr = 64 // RPI; lgl = {32: 5, 16: 4}[lpr]
    a(f'''v_lshrrev_b32 v{T}, {lgl}, v0
    s_mul_i32 s{g.sM0}, s{g.sWv}, {RPI}
    v_add_u32 v{T}, s{g.sM0}, v{T}
    v_and_b32 v{T+1}, 3, v{T}
    v_lshlrev_b32 v{T+1}, 2, v{T+1}
    v_and_b32 v{T+2}, {lpr-1}, v0
    v_xor_b32 v{T+1}, v{T+1}, v{T+2}''')
    if wrow: wrow(a, T)
    a(f'''s_mov_b32 s{g.sM0}, {wstride}
    v_mul_lo_u32 v{g.vWD}, v{T}, s{g.sM0}
    v_lshl_add_u32 v{g.vWD}, v{T+1}, 4, v{g.vWD}''')
    a(f'''v_bfe_u32 v{T}, v0, 2, 2
    v_lshrrev_b32 v{T+1}, 5, v0
    v_lshl_add_u32 v{T+1}, v{T+1}, 3, v{T}
    v_mul_u32_u24 v{T+1}, {2*BN}, v{T+1}
    v_add_u32 v{T+1}, {XB}, v{T+1}
    v_lshlrev_b32 v{T}, 6, v{T}
    v_bfe_u32 v{T+2}, v0, 4, 1
    v_lshlrev_b32 v{T+2}, 5, v{T+2}''')
    if featperm:
        a(f'''v_and_b32 v{T+3}, 1, v0
        v_lshl_add_u32 v{T+2}, v{T+3}, 4, v{T+2}
        v_bfe_u32 v{T+3}, v0, 1, 1
        v_lshl_add_u32 v{T+2}, v{T+3}, 3, v{T+2}''')
    else:
        a(f'v_and_b32 v{T+3}, 3, v0\nv_lshl_add_u32 v{T+2}, v{T+3}, 3, v{T+2}')
    a(f's_mul_i32 s{g.sM0}, s{g.sB}, {NT*64}\nv_add_u32 v{T+2}, s{g.sM0}, v{T+2}')
    for nt in range(NT):
        a(f'v_add_u32 v{T+3}, {nt*64}, v{T+2}\nv_xor_b32 v{T+3}, v{T+3}, v{T}\nv_add_u32 v{g.vWR+nt}, v{T+3}, v{T+1}')
    a(f's_lshl_b32 s{g.sWX}, s{g.sWv}, 10\ns_add_u32 s{g.sWW}, s{g.sWX}, {XB}')

def gemm_loop(a, tag, BN, WM, WN, xmode, swap, nstage, x_i, x_stage, w_i, w_stage, zero=True, ldflav='', w_stage2=None):
    g = G
    MT, NT = 256 // WM // 32, BN // WN // 32
    NXI, NWI = 4, BN // 64
    FS = 4 * (MT + NT)
    fx = lambda st, mt: g.FR + st * FS + 4 * mt
    fw = lambda st, nt: g.FR + st * FS + 4 * MT + 4 * nt
    acc = lambda mt, nt: g.ACC + 16 * (mt * NT + nt)
    mstep = 4096 if xmode == 'row' else 512
    def reads(st, ks):
        r = []
        xs = [f'ds_read_b128 {v(fx(st,mt),4)}, v{g.vXR+ks} offset:{mt*mstep}' for mt in range(MT)]
        ws = [f'ds_read_b64_tr_b16 {v(fw(st,nt)+2*rd,2)}, v{g.vWR+nt} offset:{(16*ks+4*rd)*2*BN}' for nt in range(NT) for rd in range(2)]
        r = [xs[0]] + ws + xs[1:]
        return r
    def dmas():
        d = []
        for i in range(NXI):
            d.append(f's_add_u32 m0, s{g.sWX}, {i*8192}\ns_add_u32 s{g.sM0}, s{g.sXo}, {i*x_i}\nbuffer_load_dwordx4 v{g.vXD}, s[{g.XS}:{g.XS+3}], s{g.sM0} offen{ldflav} lds')
        for i in range(NWI):
            d.append(f's_add_u32 m0, s{g.sWW}, {i*8192}\ns_add_u32 s{g.sM0}, s{g.sWo}, {i*w_i}\nbuffer_load_dwordx4 v{g.vWD}, s[{g.WSR}:{g.WSR+3}], s{g.sM0} offen{ldflav} lds')
        return d
    def advance():
        t = f's_add_u32 s{g.sXo}, s{g.sXo}, {x_stage}\n'
        if w_stage2 is None: t += f's_add_u32 s{g.sWo}, s{g.sWo}, {w_stage}\n'
        else: t += f's_bitcmp1_b32 s{g.sWX}, 16\ns_cselect_b32 s{g.sM0}, {w_stage2-w_stage}, 0\ns_add_u32 s{g.sWo}, s{g.sWo}, s{g.sM0}\ns_add_u32 s{g.sWo}, s{g.sWo}, {w_stage}\n'
        t += f's_xor_b32 s{g.sWX}, s{g.sWX}, 0x10000\ns_xor_b32 s{g.sWW}, s{g.sWW}, 0x10000'
        return t
    def mfmas(st):
        m = []
        for mt in range(MT):
            for nt in range(NT):
                d = v(acc(mt, nt), 16); X = v(fx(st, mt), 4); Wf = v(fw(st, nt), 4)
                if g.FAKE16:
                    for h in range(2):
                        d = v(acc(mt, nt) + 8*st + 4*h, 4); X2 = v(fx(st, (mt + h) % MT), 4)
                        m.append(f'v_mfma_f32_16x16x32_bf16 {d}, {Wf}, {X2}, {d}')
                    continue
                m.append(f'v_mfma_f32_32x32x16_bf16 {d}, {Wf if swap else X}, {X if swap else Wf}, {d}')
        return m
    def weave(m, fill):
        per = -(-len(fill) // len(m)) if fill else 0
        per = max(per, 1 if g.FAKE16 else 2)
        for x in m:
            a(x)
            for _ in range(per):
                if fill: a(fill.pop(0))
        for f in fill: a(f)
    a('s_barrier')
    for d in dmas(): a(d)
    a(advance())
    for d in dmas(): a(d)
    a(advance())
    a(f's_mov_b32 s{g.sCnt}, {nstage}')
    if zero:
        for r in range(16 * MT * NT): a(f'v_mov_b32 v{g.ACC+r}, 0')
    a(f's_waitcnt vmcnt({NXI+NWI})\ns_barrier')
    if g.TRACE: a('s_memtime s[90:91]\ns_memrealtime s[92:93]')
    for r in reads(0, 0): a(r)
    a(f'{tag}_LOOP:')
    for ks in range(3):
        a('s_waitcnt lgkmcnt(0)')
        weave(mfmas(ks & 1), reads((ks + 1) & 1, ks + 1))
    tog = [f'v_xor_b32 v{g.vXR+k}, 0x10000, v{g.vXR+k}' for k in range(4)] + [f'v_xor_b32 v{g.vWR+n}, 0x10000, v{g.vWR+n}' for n in range(NT)]
    for t in tog: a(t)
    a(f's_sub_u32 s{g.sCnt}, s{g.sCnt}, 1')
    a('s_waitcnt vmcnt(0) lgkmcnt(0)\ns_barrier')
    a(f's_cmp_lt_u32 s{g.sCnt}, 2\ns_cbranch_scc1 {tag}_TAIL')
    rd = reads(0, 0); dm = dmas(); fill = []
    while rd or dm:
        if rd: fill.append(rd.pop(0))
        if rd and len(rd) > len(dm): fill.append(rd.pop(0))
        if dm: fill.append(dm.pop(0))
    weave(mfmas(1), fill)
    a(advance())
    a(f's_branch {tag}_LOOP')
    a(f'{tag}_TAIL:')
    weave(mfmas(1), reads(0, 0))
    a(f's_cmp_lg_u32 s{g.sCnt}, 0\ns_cbranch_scc1 {tag}_LOOP')
    if g.TRACE: a('s_memtime s[94:95]\ns_memrealtime s[96:97]')
    a('s_waitcnt lgkmcnt(0)\ns_nop 15')
    return acc
```

```python
from asmlib import *
from layout import *
from gemm import *
from rec import srd, WS

sRB, sCB = 77, 78
sTY = 79
sEO = 80

def gen_gemm1(a, tag, BN, done, stflav='', ldflav=''):
    g = G; T = g.vT; W = f's[{WS}:{WS+3}]'
    WM, WN = (2, 4) if BN == 256 else (4, 2)
    MT, NT = 256 // WM // 32, BN // WN // 32
    a(f's_load_dwordx2 s[4:5], s[0:1], 0')
    a(f'''s_cmp_eq_u32 s{sTY}, 0
    s_cselect_b32 s{g.sM0}, 24, 32
    s_cmp_eq_u32 s{sTY}, 2
    s_cselect_b32 s{g.sM0}, 16, s{g.sM0}
    s_cmp_eq_u32 s{sTY}, 3
    s_cselect_b32 s{g.sM0}, 104, s{g.sM0}
    s_load_dwordx2 s[6:7], s[0:1], s{g.sM0}
    s_lshl_b32 s{g.sXo}, s{sRB}, 19
    s_mul_i32 s{g.sWo}, s{sCB}, {2*BN}
    s_waitcnt lgkmcnt(0)''')
    srd(a, g.XS, 4, 4*MB)
    srd(a, g.WSR, 6, 8*MB)
    a(f's_cmp_eq_u32 s{sTY}, 3\ns_cbranch_scc1 {tag}_F')
    a(f's_cmp_eq_u32 s{sTY}, 1\ns_cbranch_scc1 {tag}_V')
    RPI = 512 // BN
    gemm_setup(a, BN, WM, WN, 'row', 2048, 8192, True)
    acc = gemm_loop(a, tag+'_KQ', BN, WM, WN, 'row', True, 16, 64*2048, 128, 8*RPI*8192, 64*8192, ldflav=ldflav)
    def blockbase(shift_reg_or_imm, base):
        a(f'''s_lshl_b32 s{sEO}, s{sRB}, 3
        s_mul_i32 s{g.sM0}, s{g.sA}, {MT}
        s_add_u32 s{sEO}, s{sEO}, s{g.sM0}
        s_lshl_b32 s{sEO}, s{sEO}, 5
        s_mul_i32 s{g.sM0}, s{sCB}, {BN//128}
        s_add_u32 s{sEO}, s{sEO}, s{g.sM0}
        s_lshr_b32 s{g.sM0}, s{g.sB}, 1
        s_add_u32 s{sEO}, s{sEO}, s{g.sM0}
        s_lshl_b32 s{sEO}, s{sEO}, {shift_reg_or_imm}
        s_add_u32 s{sEO}, s{sEO}, {base}''')
    a(f'''s_cmp_eq_u32 s{sTY}, 0
    s_cselect_b32 s{g.sCnt}, 14, 13
    s_mov_b32 s{g.sXo}, {Q_BASE}
    s_cselect_b32 s{g.sXo}, {KV_BASE}, s{g.sXo}''')
    blockbase(f's{g.sCnt}', f's{g.sXo}')
    a(f's_lshl_b32 s{g.sCnt}, 32, s{g.sCnt}')
    a(f'''v_and_b32 v{T}, 7, v0
    v_lshlrev_b32 v{T}, 4, v{T}
    v_bfe_u32 v{T+1}, v0, 4, 1
    v_lshl_add_u32 v{T}, v{T+1}, 7, v{T}
    v_bfe_u32 v{T+1}, v0, 5, 1
    v_lshl_add_u32 v{T}, v{T+1}, 8, v{T}
    v_bfe_u32 v{T+1}, v0, 3, 1
    v_lshl_add_u32 v{T}, v{T+1}, 12, v{T}
    s_and_b32 s{g.sM0}, s{g.sB}, 1
    s_lshl_b32 s{g.sM0}, s{g.sM0}, 11
    v_add_u32 v{T}, s{g.sM0}, v{T}''')
    P = g.FR
    n = 0
    for mt in range(MT):
        for nt in range(NT):
            for h in range(2):
                p = P + 4 * (n % 8); n += 1
                for j in range(4): a(f'v_cvt_pk_bf16_f32 v{p+j}, v{acc(mt,nt)+8*h+2*j}, v{acc(mt,nt)+8*h+2*j+1}')
                a(f'buffer_store_dwordx4 {v(p,4)}, v{T}, {W}, s{sEO} offen offset:{nt*1024+h*512}{stflav}')
        a(f's_add_u32 s{sEO}, s{sEO}, s{g.sCnt}')
    a(f's_branch {done}')
    a(f'{tag}_V:')
    gemm_setup(a, BN, WM, WN, 'row', 2048, 8192, False)
    a(f's_mov_b32 s{sEO}, {8*RPI*8192}\ns_mov_b32 s{sEO+1}, {64*8192}\ns_branch {tag}_VF')
    a(f'{tag}_F:')
    a(f's_mov_b32 s{g.WSR+2}, {WS_SIZE}\ns_add_u32 s{g.sWo}, s{g.sWo}, {FD_BASE}')
    gemm_setup(a, BN, WM, WN, 'row', 2048, 2048, False)
    a(f's_mov_b32 s{sEO}, {8*RPI*2048}\ns_mov_b32 s{sEO+1}, {64*2048}')
    a(f'{tag}_VF:')
    a(f's_lshl_b32 s{sEO+2}, s{sEO}, 1\ns_add_u32 s{sEO+3}, s{sEO+2}, s{sEO}')
    class RS:
        def __rmul__(self, i): return ['0', f's{sEO}', f's{sEO+2}', f's{sEO+3}'][i]
    acc = gemm_loop(a, tag+'_VF', BN, WM, WN, 'row', False, 16, 64*2048, 128, RS(), f's{sEO+1}', ldflav=ldflav)
    a(f's_cmp_eq_u32 s{sTY}, 3\ns_cbranch_scc1 {tag}_FE')
    blockbase(14, KV_BASE + 8192)
    a(f'''v_bfe_u32 v{T}, v0, 1, 4
    v_lshlrev_b32 v{T}, 4, v{T}
    v_and_b32 v{T+1}, 1, v0
    v_lshl_add_u32 v{T}, v{T+1}, 10, v{T}
    v_bfe_u32 v{T+1}, v0, 5, 1
    v_lshl_add_u32 v{T}, v{T+1}, 8, v{T}
    s_and_b32 s{g.sM0}, s{g.sB}, 1
    s_lshl_b32 s{g.sM0}, s{g.sM0}, 12
    v_add_u32 v{T}, s{g.sM0}, v{T}''')
    n = 0
    for mt in range(MT):
        for nt in range(NT):
            for m in range(2):
                p = P + 4 * (n % 8); n += 1
                for j in range(4): a(f'v_cvt_pk_bf16_f32 v{p+j}, v{acc(mt,nt)+8*m+2*j}, v{acc(mt,nt)+8*m+2*j+1}')
                a(f'buffer_store_dwordx4 {v(p,4)}, v{T}, {W}, s{sEO} offen offset:{nt*2048+m*512}{stflav}')
        a(f's_add_u32 s{sEO}, s{sEO}, {32*16384}')
    a(f's_branch {done}')
    a(f'{tag}_FE:')
    a(f'''s_mul_i32 s{sEO}, s{sCB}, {BN}
    s_lshl_b32 s{g.sM0}, s{g.sB}, 6
    s_add_u32 s{sEO}, s{sEO}, s{g.sM0}
    s_lshl_b32 s{sEO}, s{sEO}, 12
    s_lshl_b32 s{g.sM0}, s{sRB}, 9
    s_add_u32 s{sEO}, s{sEO}, s{g.sM0}
    s_mul_i32 s{g.sM0}, s{g.sA}, {MT*64}
    s_add_u32 s{sEO}, s{sEO}, s{g.sM0}
    s_add_u32 s{sEO}, s{sEO}, {X1T_BASE}
    s_add_u32 s{sEO+1}, s{sEO}, {32*4096}
    v_and_b32 v{T}, 31, v0
    v_lshlrev_b32 v{T}, 12, v{T}
    v_bfe_u32 v{T+1}, v0, 5, 1
    v_lshl_add_u32 v{T}, v{T+1}, 4, v{T}''')
    n = 0
    for nt in range(NT):
        for mt in range(MT):
            for m in range(2):
                p = P + 4 * (n % 8); n += 1
                for j in range(4): a(f'v_cvt_pk_bf16_f32 v{p+j}, v{acc(mt,nt)+8*m+2*j}, v{acc(mt,nt)+8*m+2*j+1}')
                a(f's_nop 1\nv_permlane32_swap_b32 v{p}, v{p+2}\nv_permlane32_swap_b32 v{p+1}, v{p+3}')
                a(f'buffer_store_dwordx4 {v(p,4)}, v{T}, {W}, s{sEO+nt} offen offset:{mt*64+m*32}{stflav}')
    a(f's_branch {done}')
```

```python
MB = 1 << 20
WS_SIZE = 256 * MB
MSG0 = 0
MSG1 = 2 * MB
UNIT = 16384
KV_BASE = 4 * MB
Q_BASE = 36 * MB
KVM_BASE = 52 * MB
O_BASE = 84 * MB
X1T_BASE = 100 * MB
Z_BASE = 104 * MB
FD_BASE = 108 * MB
FI_BASE = 110 * MB
WT_BASE = 112 * MB
G_BASE = 118 * MB
CNT_BASE = 119 * MB
PART_BASE = 120 * MB
C_KV, C_Q, C_G2, C_AT, C_PREP, C_WT, C_F, C_FFT, C_KVM, C_END = 0, 32, 64, 96, 104, 105, 106, 107, 112, 368
KV_GS, KV_TARGET, KV_SEGS = 8, 32, 8
B1F_BASE = 184 * MB
CFG_BASE = 249 * MB
STAMP_BASE = 250 * MB
```

```python
from asmlib import *
from layout import *
from gemm import *
from gemm1 import sRB, sCB
from rec import srd, WS, TS, f2u, sP0
import math
W = f's[{WS}:{WS+3}]'
sWv = G.sWv
sTK = 84
sU0, sU1, sU2, sU3 = 85, 86, 87, 88

def trig_row(a, dst, fv, ph, base, scale):
    a(f'v_mad_u32_u24 v20, v{base}, v{fv}, v{ph}')
    for e in range(8):
        if e: a(f'v_add_u32 v20, v20, v{fv}')
        a(f'v_and_b32 v{21+e}, 1023, v20\nv_cvt_f32_u32 v{21+e}, v{21+e}\nv_mul_f32 v{21+e}, {f2u(1/1024):#x}, v{21+e}')
    for e in range(8): a(f'v_cos_f32 v{21+e}, v{21+e}')
    if scale is not None:
        a('s_nop 0')
        for e in range(8): a(f'v_mul_f32 v{21+e}, v{scale}, v{21+e}')
    a('s_nop 0')
    for j in range(4): a(f'v_cvt_pk_bf16_f32 v{dst+j}, v{21+2*j}, v{22+2*j}')

def gen_prep(a, tag, stflav=''):
    a(f'''s_lshl_b32 s{sU0}, s{sTK}, 2
    s_lshr_b32 s{sU1}, s{sWv}, 1
    s_add_u32 s{sU0}, s{sU0}, s{sU1}
    s_and_b32 s{sU1}, s{sWv}, 1
    s_lshl_b32 s{sU1}, s{sU1}, 6
    v_add_u32 v1, s{sU1}, v0
    v_lshlrev_b32 v2, 3, v1
    s_lshr_b32 s{sU2}, s{sU0}, 1
    s_and_b32 s{sU3}, s{sU0}, 1
    s_lshl_b32 s{sU3}, s{sU3}, 8
    s_cmp_eq_u32 s{sU0}, 1
    s_cselect_b32 s{sU2}, 512, s{sU2}
    s_cselect_b32 s{sU3}, 0, s{sU3}
    v_mov_b32 v3, s{sU2}
    v_mov_b32 v4, s{sU3}
    s_mov_b32 s{sU2}, {f2u(2.0**-20):#x}
    s_cmp_lt_u32 s{sU0}, 2
    s_cselect_b32 s{sU2}, {f2u(2.0**-21):#x}, s{sU2}
    v_mov_b32 v5, s{sU2}''')
    trig_row(a, 8, 3, 4, 2, 5)
    a(f'''v_lshlrev_b32 v6, 4, v1
    s_lshl_b32 s{sU2}, s{sU0}, 11
    s_add_u32 s{sU3}, s{sU2}, {FI_BASE}
    buffer_store_dwordx4 v[8:11], v6, {W}, s{sU3} offen{stflav}''')
    a(f'v_lshlrev_b32 v2, 2, v1\nv_mul_u32_u24 v20, s{sU0}, v2')
    for j in range(4):
        if j: a(f'v_add_u32 v20, s{sU0}, v20')
        a(f'v_and_b32 v{21+j}, 1023, v20\nv_cvt_f32_u32 v{21+j}, v{21+j}\nv_mul_f32 v{21+j}, {f2u(1/1024):#x}, v{21+j}')
    for j in range(4): a(f'v_sin_f32 v{25+j}, v{21+j}')
    for j in range(4): a(f'v_cos_f32 v{21+j}, v{21+j}')
    a(f'''s_bitcmp1_b32 s{sU0}, 0
    s_cselect_b32 s{sU3}, 1.0, -1.0
    v_mov_b32 v3, s{sU3}
    v_cmp_eq_u32 vcc, 0, v1
    s_nop 1
    v_cndmask_b32 v25, v25, v3, vcc''')
    for j in range(4): a(f'v_cvt_pk_bf16_f32 v{12+j}, v{21+j}, -v{25+j}')
    a(f's_add_u32 s{sU3}, s{sU2}, {FD_BASE}\nbuffer_store_dwordx4 v[12:15], v6, {W}, s{sU3} offen{stflav}')
    a(f'''s_load_dwordx2 s[4:5], s[0:1], 0
    s_load_dwordx2 s[6:7], s[0:1], 80
    s_lshl_b32 s{sU0}, s{sTK}, 3
    s_add_u32 s{sU0}, s{sU0}, s{sWv}
    s_lshl_b32 s{sU1}, s{sU0}, 11
    v_lshlrev_b32 v1, 4, v0
    s_waitcnt lgkmcnt(0)''')
    srd(a, TS, 4, 4*MB)
    a(f'buffer_load_dwordx4 v[32:35], v1, s[{TS}:{TS+3}], s{sU1} offen\nbuffer_load_dwordx4 v[36:39], v1, s[{TS}:{TS+3}], s{sU1} offen offset:1024')
    srd(a, TS, 6, 2048)
    a(f'buffer_load_dwordx4 v[40:43], v1, s[{TS}:{TS+3}], 0 offen\nbuffer_load_dwordx4 v[44:47], v1, s[{TS}:{TS+3}], 0 offen offset:1024')
    a('v_mov_b32 v2, 0\ns_waitcnt vmcnt(0)')
    for j in range(8):
        a(f'''v_lshlrev_b32 v3, 16, v{32+j}
        v_and_b32 v4, 0xffff0000, v{32+j}
        v_lshlrev_b32 v5, 16, v{40+j}
        v_and_b32 v7, 0xffff0000, v{40+j}
        v_mul_f32 v3, v3, v5
        v_mul_f32 v4, v4, v7
        v_cvt_pk_bf16_f32 v3, v3, v4
        v_lshlrev_b32 v4, 16, v3
        v_and_b32 v3, 0xffff0000, v3
        v_add_f32 v2, v2, v4
        v_add_f32 v2, v2, v3''')
    for sh in ('row_shr:1', 'row_shr:2', 'row_shr:4', 'row_shr:8'):
        a(f's_nop 1\nv_add_f32_dpp v2, v2, v2 {sh} row_mask:0xf bank_mask:0xf bound_ctrl:0')
    a('''v_mov_b32 v3, v2
    s_nop 1
    v_permlane16_swap_b32 v2, v3
    v_add_f32 v2, v2, v3
    v_mov_b32 v3, v2
    s_nop 1
    v_permlane32_swap_b32 v2, v3
    v_add_f32 v2, v2, v3''')
    rnd = lambda r: a(f'v_cvt_pk_bf16_f32 v{r}, v{r}, v{r}\nv_lshlrev_b32 v{r}, 16, v{r}')
    rnd(2)
    a(f'''v_mul_f32 v2, {f2u(-math.log2(math.e)):#x}, v2
    v_exp_f32 v2, v2
    s_nop 0
    v_add_f32 v2, 1.0, v2
    v_rcp_f32 v2, v2
    s_nop 0''')
    rnd(2)
    a('v_sub_f32 v3, 1.0, v2')
    rnd(3)
    a(f'''s_lshl_b32 s{sU1}, s{sU0}, 2
    s_add_u32 s{sU1}, s{sU1}, {G_BASE}
    s_add_u32 s{sU2}, s{sU1}, 8192
    s_mov_b64 exec, 0x8000
    buffer_store_dword v2, off, {W}, s{sU1}{stflav}
    buffer_store_dword v3, off, {W}, s{sU2}{stflav}
    s_mov_b64 exec, -1''')

def gen_wt(a, tag, stflav=''):
    a(f'''s_load_dwordx4 s[4:7], s[0:1], 64
    s_mul_i32 s{sU0}, s{sTK}, 32832
    s_lshl_b32 s{sU1}, s{sWv}, 10
    s_add_u32 s{sU0}, s{sU0}, s{sU1}
    v_lshlrev_b32 v1, 4, v0
    s_barrier
    s_waitcnt lgkmcnt(0)''')
    for arr in range(2):
        srd(a, TS, 4 + 2*arr, 2048*1026)
        for i in range(5):
            if i == 4: a(f's_cmp_lg_u32 s{sWv}, 0\ns_cbranch_scc1 {tag}_S{arr}')
            a(f's_add_u32 m0, s{sU1}, {arr*33792 + i*8192}\ns_add_u32 s{sU2}, s{sU0}, {i*8192}')
            a(f'buffer_load_dwordx4 v1, s[{TS}:{TS+3}], s{sU2} offen lds')
        a(f'{tag}_S{arr}:')
    a(f'''v_and_b32 v2, 31, v0
    v_lshrrev_b32 v3, 5, v0
    v_mul_u32_u24 v4, 1026, v2
    v_lshl_add_u32 v4, v3, 1, v4
    s_lshl_b32 s{sU2}, s{sWv}, 2
    v_add_u32 v4, s{sU2}, v4
    v_lshlrev_b32 v5, 13, v3
    v_lshl_add_u32 v5, v2, 2, v5
    s_lshl_b32 s{sU0}, s{sWv}, 14
    s_lshl_b32 s{sU2}, s{sTK}, 7
    s_add_u32 s{sU0}, s{sU0}, s{sU2}
    s_add_u32 s{sU0}, s{sU0}, {WT_BASE}
    s_waitcnt vmcnt(0)
    s_barrier''')
    for j0 in range(0, 33, 6):
        js = list(range(j0, min(33, j0+6)))
        for q, j in enumerate(js):
            a(f'ds_read_u16 v{8+2*q}, v4 offset:{32*j}\nds_read_u16 v{9+2*q}, v4 offset:{33792+32*j}')
        a('s_waitcnt lgkmcnt(0)')
        for q, j in enumerate(js):
            a(f'v_lshl_or_b32 v{24+j}, v{9+2*q}, 16, v{8+2*q}')
            a(f'buffer_store_dword v{24+j}, v5, {W}, s{sU0} offen{stflav}\ns_add_u32 s{sU0}, s{sU0}, {16*8192}')

AT = dict(vLD=2, vVR=3, vOS=4, vGL=5, vM=6, vM2=8, vT=7, PK=12, CM=16, MK=20, GT=36, L=44, PM=48, PX=54, ONES=58,
          S=66, OD=78, T=112, Q=128, KX=160, VX=192, VM=224)
def gen_attn_setup(a):
    r = AT
    a(f"""v_lshlrev_b32 v{r['vLD']}, 4, v0
    v_or_b32 v1, 128, v{r['vLD']}
    v_and_b32 v10, 31, v0
    v_lshlrev_b32 v{r['vVR']}, 4, v10
    v_and_b32 v{r['vM']}, 7, v0
    v_bfe_u32 v11, v0, 3, 1
    v_lshl_add_u32 v{r['vM']}, v11, 4, v{r['vM']}
    v_lshlrev_b32 v{r['vGL']}, 2, v{r['vM']}
    v_lshrrev_b32 v9, 4, v0
    v_lshlrev_b32 v{r['vOS']}, 13, v{r['vM']}
    v_lshl_add_u32 v{r['vOS']}, v9, 4, v{r['vOS']}
    v_bfe_u32 v11, v0, 4, 1
    v_lshlrev_b32 v{r['vT']}, 2, v11
    v_lshrrev_b32 v11, 5, v0
    v_lshl_add_u32 v{r['vT']}, v11, 4, v{r['vT']}
    v_sub_u32 v{r['vM']}, v{r['vM']}, v{r['vT']}
    v_mov_b32 v9, 0xff800000""")
    for qt in range(2):
        for kt in range(2):
            for q in range(4):
                a(f'v_cmp_gt_i32 vcc, {8*kt+q-8*qt}, v{r["vM"]}\ns_nop 1\nv_cndmask_b32 v{r["MK"]+(qt*2+kt)*4+q}, 0, v9, vcc')
    a('v_cmp_gt_u32 vcc, 32, v0\ns_nop 1')
    for q in range(4): a(f'v_cndmask_b32 v{r["CM"]+q}, 0, v9, vcc')
    for q in range(4): a(f'v_mov_b32 v{r["ONES"]+q}, 0x3f803f80')
    a(f's_mov_b32 s40, {f2u(128**-0.5 * math.log2(math.e)):#x}\ns_mov_b32 s41, {f2u(-128**-0.5 * math.log2(math.e)):#x}')

def gen_attn_loads(a, ldflav=''):
    r = AT
    def ld(dst, n, sbase, vo, step=1024):
        for i in range(n):
            if i % 4 == 0 and i: a(f's_add_u32 s{sbase}, s{sbase}, 4096')
            a(f'buffer_load_dwordx4 {v(dst+4*i,4)}, v{vo}, {W}, s{sbase} offen offset:{(i%4)*step}{ldflav}')
    a(f's_lshl_b32 s{sU1}, s{sU0}, 13\ns_add_u32 s{sU1}, s{sU1}, {Q_BASE}'); ld(r['Q'], 8, sU1, r['vLD'])
    a(f's_lshl_b32 s{sU2}, s{sU0}, 14\ns_add_u32 s{sU1}, s{sU2}, {KVM_BASE}')
    a(f's_lshr_b32 s{sU3}, s{sU1}, 8\ns_xor_b32 s{sU3}, s{sU3}, s{sP0}\ns_and_b32 s{sU3}, s{sU3}, 0x2000\ns_add_u32 s{sU1}, s{sU1}, s{sU3}')
    ld(r['T'], 4, sU1, 1)
    a(f's_add_u32 s{sU3}, s{sU2}, {KV_BASE}'); ld(r['KX'], 16, sU3, r['vLD'])
    a(f's_add_u32 s{sU1}, s{sU1}, 4096'); ld(r['VM'], 4, sU1, r['vVR'], 512)
    a(f's_lshr_b32 s{sU1}, s{sU0}, 5\ns_lshl_b32 s{sU2}, s{sU1}, 7\ns_add_u32 s{sU2}, s{sU2}, {G_BASE}')
    for qt in range(2): a(f'buffer_load_dword v{r["GT"]+qt}, v{r["vGL"]}, {W}, s{sU2} offen offset:{32*qt}{ldflav}')
    a(f"""s_lshl_b32 s{sU1}, s{sU1}, 18
    s_and_b32 s{sU2}, s{sU0}, 31
    s_lshl_b32 s{sU2}, s{sU2}, 8
    s_add_u32 s{sU1}, s{sU1}, s{sU2}
    s_add_u32 s{sU1}, s{sU1}, {O_BASE}""")

def gen_attn(a, ldflav='', stflav=''):
    r = AT; S, T, Q, KX, VX, VM, OD, L, PM, PX = (r[k] for k in ('S','T','Q','KX','VX','VM','OD','L','PM','PX'))
    vM, vM2, vT = r['vM'], r['vM2'], r['vT']
    gen_attn_loads(a, ldflav)
    for qt in range(2):
        if qt == 0: a('s_waitcnt vmcnt(14)')
        for k in range(4):
            qk = v(Q+(qt*4+k)*4,4)
            a(f'v_mfma_f32_16x16x32_bf16 {v(S,4)}, {v(T+4*k,4)}, {qk}, {v(r["CM"],4) if k==0 else v(S,4)}')
            for t in range(2):
                d = v(S+4+4*t,4)
                a(f'v_mfma_f32_16x16x32_bf16 {d}, {v(KX+(t*4+k)*4,4)}, {qk}, {v(r["MK"]+(qt*2+t)*4,4) if k==0 else d}')
        a(f"""s_nop 7
        v_max3_f32 v{vM}, v{S}, v{S+1}, v{S+2}
        v_max3_f32 v{vM2}, v{S+3}, v{S+4}, v{S+5}
        v_max3_f32 v{vM}, v{vM}, v{S+6}, v{S+7}
        v_max3_f32 v{vM2}, v{vM2}, v{S+8}, v{S+9}
        v_max3_f32 v{vM}, v{vM}, v{S+10}, v{S+11}
        v_max_f32 v{vT}, v{vM}, v{vM2}
        v_max_f32 v{vM}, v{vM}, v{vM2}
        s_nop 1
        v_permlane32_swap_b32 v{vM}, v{vT}
        v_max_f32 v{vM2}, v{vM}, v{vT}
        v_max_f32 v{vM}, v{vM}, v{vT}
        s_nop 1
        v_permlane16_swap_b32 v{vM}, v{vM2}
        v_max_f32 v{vM}, v{vM}, v{vM2}
        v_mul_f32 v{vM2}, s41, v{vM}""")
        for q in range(0, 12, 2): a(f'v_pk_fma_f32 {v(S+q,2)}, {v(S+q,2)}, s[40:41], {v(vM2,2)} op_sel_hi:[1,0,0]')
        for q in range(12): a(f'v_exp_f32 v{S+q}, v{S+q}')
        a(f'v_cvt_pk_bf16_f32 v{PM}, v{S}, v{S+1}\nv_cvt_pk_bf16_f32 v{PM+1}, v{S+2}, v{S+3}')
        for q in range(4): a(f'v_cvt_pk_bf16_f32 v{PX+q}, v{S+4+2*q}, v{S+5+2*q}')
        if qt == 0: a('s_waitcnt vmcnt(0)')
        a(f'v_mfma_f32_16x16x16_bf16 {v(L,4)}, {v(r["ONES"],2)}, {v(PM,2)}, 0')
        for t in range(8): a(f'v_mfma_f32_16x16x16_bf16 {v(OD+4*t,4)}, {v(VM+2*t,2)}, {v(PM,2)}, 0')
        a(f'v_mfma_f32_16x16x32_bf16 {v(L,4)}, {v(r["ONES"],4)}, {v(PX,4)}, {v(L,4)}')
        for t in range(8): a(f'v_mfma_f32_16x16x32_bf16 {v(OD+4*t,4)}, {v(VX+4*t,4)}, {v(PX,4)}, {v(OD+4*t,4)}')
        a(f'v_rcp_f32 v{L}, v{L}\ns_nop 0\nv_mul_f32 v{L}, v{L}, v{r["GT"]+qt}')
        for q in range(0, 32, 2): a(f'v_pk_mul_f32 {v(OD+q,2)}, {v(OD+q,2)}, {v(L,2)} op_sel_hi:[1,0]')
        if qt: a(f's_add_u32 s{sU1}, s{sU1}, {8*8192}')
        for n in range(4):
            pk = r['PK'] if n % 2 == 0 else 240
            for q in range(4): a(f'v_cvt_pk_bf16_f32 v{pk+q}, v{OD+8*n+q}, v{OD+8*n+4+q}')
            a(f'buffer_store_dwordx4 {v(pk,4)}, v{r["vOS"]}, {W}, s{sU1} offen offset:{64*n}{stflav}')

F_W64, F_W32, F_TW1, F_TW2, F_ST = 0, 24576, 30720, 47104, 65536
def gen_fft_tables(a):
    a('s_barrier\nv_and_b32 v1, 31, v0\nv_lshrrev_b32 v2, 5, v0\nv_lshlrev_b32 v2, 2, v2\nv_lshlrev_b32 v3, 4, v0')
    def frag(n_reg, k0_reg, mask, inv, dst_s):
        for e in range(8):
            a(f'v_add_u32 v{8+e}, {8*(e>>2)+(e&3)}, v{k0_reg}\nv_mul_u32_u24 v{8+e}, v{8+e}, v{n_reg}\nv_and_b32 v{8+e}, {mask}, v{8+e}\nv_cvt_f32_u32 v{8+e}, v{8+e}\nv_mul_f32 v{8+e}, {f2u(inv):#x}, v{8+e}')
        for e in range(8): a(f'v_sin_f32 v{16+e}, v{8+e}')
        for e in range(8): a(f'v_cos_f32 v{8+e}, v{8+e}')
        a('s_nop 0')
        for j in range(4):
            a(f'v_cvt_pk_bf16_f32 v{24+j}, v{8+2*j}, v{9+2*j}\nv_cvt_pk_bf16_f32 v{28+j}, v{16+2*j}, v{17+2*j}\nv_cvt_pk_bf16_f32 v{32+j}, -v{16+2*j}, -v{17+2*j}')
    a(f'''s_lshr_b32 s{sU0}, s{sWv}, 2
    s_lshl_b32 s{sU0}, s{sU0}, 5
    v_add_u32 v4, s{sU0}, v1
    s_and_b32 s{sU0}, s{sWv}, 3
    s_lshl_b32 s{sU0}, s{sU0}, 4
    v_add_u32 v5, s{sU0}, v2
    s_lshl_b32 s{sU0}, s{sWv}, 10
    v_add_u32 v6, s{sU0}, v3''')
    frag(4, 5, 63, 1/64, None)
    for kd in range(3): a(f'ds_write_b128 v6, {v(24+4*kd,4)} offset:{F_W64+kd*8192}')
    a(f'''s_and_b32 s{sU0}, s{sWv}, 1
    s_lshl_b32 s{sU1}, s{sU0}, 4
    v_add_u32 v5, s{sU1}, v2
    s_lshl_b32 s{sU0}, s{sU0}, 10
    v_add_u32 v7, s{sU0}, v3''')
    frag(1, 5, 31, 1/32, None)
    for kd in range(3): a(f'ds_write_b128 v7, {v(24+4*kd,4)} offset:{F_W32+kd*2048}')
    a(f'''s_lshl_b32 s{sU0}, s{sWv}, 11
    v_add_u32 v6, s{sU0}, v3
    s_lshl_b32 s{sU0}, s{sWv}, 3
    v_add_u32 v5, s{sU0}, v2
    s_and_b32 s{sU0}, s{sU0}, 31
    v_add_u32 v7, s{sU0}, v2''')
    for (n_reg, k_reg, off) in ((1, 5, F_TW1), (4, 7, F_TW2)):
        for b in range(4):
            a(f'v_add_u32 v{8+b}, {b}, v{k_reg}\nv_mul_u32_u24 v{8+b}, v{8+b}, v{n_reg}\nv_cvt_f32_u32 v{8+b}, v{8+b}\nv_mul_f32 v{8+b}, {f2u(1/2048):#x}, v{8+b}')
        for b in range(4): a(f'v_sin_f32 v{16+b}, v{8+b}')
        for b in range(4): a(f'v_cos_f32 v{12+b}, v{8+b}')
        a(f's_nop 0\nds_write_b128 v6, v[12:15] offset:{off}\nds_write_b128 v6, v[16:19] offset:{off+1024}\ns_waitcnt lgkmcnt(0)')
    a('s_waitcnt lgkmcnt(0)\ns_barrier')

def gen_fft(a, tag, ldflav='', stflav=''):
    vL16, vTR, vWT, vXW, vT = 1, 2, 3, 4, 6
    TF = 8
    OPR, OPI = 32, 48
    AR, AI = 64, 200
    FL = 128; SV = 160; TM = 192
    sF, sP = sU0, sU1
    a(f'''s_lshl_b32 s{sF}, s{sTK}, 3
    s_add_u32 s{sF}, s{sF}, s{sWv}
    v_lshlrev_b32 v{vL16}, 4, v0
    s_lshl_b32 s{sU2}, s{sWv}, 13
    s_add_u32 s{sU2}, s{sU2}, {F_ST}
    v_bfe_u32 v{vT}, v0, 2, 2
    v_lshrrev_b32 v{vT+1}, 5, v0
    v_lshl_add_u32 v{vT}, v{vT+1}, 2, v{vT}
    v_lshlrev_b32 v{vTR}, 7, v{vT}
    v_bfe_u32 v{vT}, v0, 4, 1
    v_lshl_add_u32 v{vTR}, v{vT}, 5, v{vTR}
    v_and_b32 v{vT}, 3, v0
    v_lshl_add_u32 v{vTR}, v{vT}, 3, v{vTR}
    v_add_u32 v{vTR}, s{sU2}, v{vTR}
    v_and_b32 v{vT}, 31, v0
    v_lshlrev_b32 v{vWT}, 2, v{vT}
    v_lshl_add_u32 v{vWT}, v{vT+1}, 9, v{vWT}
    v_lshlrev_b32 v{vXW}, 4, v{vT}
    v_lshl_add_u32 v{vXW}, v{vT+1}, 12, v{vXW}
    s_lshr_b32 s{sU3}, s{sWv}, 2
    s_lshl_b32 s{sU3}, s{sU3}, 15
    v_add_u32 v{vXW}, s{sU3}, v{vXW}
    s_and_b32 s{sU3}, s{sWv}, 3
    s_lshl_b32 s{sU3}, s{sU3}, 2
    s_add_u32 s{sU3}, s{sU3}, {F_ST}
    v_add_u32 v{vXW}, s{sU3}, v{vXW}
    s_cmp_eq_u32 s{sF}, 0
    s_cselect_b32 s{sP}, 1, 0
    s_barrier
{tag}_PASS:''')
    a(f'''s_lshl_b32 s89, s{sF}, 1
    s_add_u32 s89, s89, s{sP}
    s_lshl_b32 s89, s89, 12
    s_add_u32 s89, s89, {X1T_BASE}
    s_add_u32 s90, s89, 4096
    s_cmp_eq_u32 s{sF}, 0
    s_cselect_b32 s90, {WS_SIZE}, s90
    s_mov_b32 m0, s{sU2}
    s_lshl_b32 s91, s{sP}, 9
    s_add_u32 s91, s91, s{sF}
    s_lshl_b32 s91, s91, 13
    s_add_u32 s91, s91, {WT_BASE}''')
    for i in range(4): a(f'buffer_load_dwordx4 v{vL16}, {W}, s89 offen offset:{i*1024}{ldflav} lds')
    a(f's_add_u32 m0, s{sU2}, 4096\ns_add_u32 s92, s91, 4096')
    for i in range(4): a(f'buffer_load_dwordx4 v{vL16}, {W}, s90 offen offset:{i*1024}{ldflav} lds')
    for blk in range(2):
        for i in range(16):
            a(f'buffer_load_dword v{FL+16*blk+i}, v{vWT}, {W}, s{91+blk} offen offset:{(8*(i>>2)+(i&3))*128}{ldflav}')
    a('s_waitcnt vmcnt(32)')
    for c, OP in ((0, OPR), (1, OPI)):
        for blk in range(2):
            for ks in range(2):
                for rd in range(2):
                    a(f'ds_read_b64_tr_b16 {v(OP+8*blk+4*ks+2*rd,2)}, v{vTR} offset:{c*4096+(16*ks+8*rd)*128+blk*64}')
        a('s_waitcnt lgkmcnt(0)')
    def dft(groups, tabbase, kstride, inverse, data_is_A):
        def rdt(gi):
            st = TF + 12*(gi & 1)
            for kd in range(3): a(f'ds_read_b128 {v(st+4*kd,4)}, v{vL16} offset:{tabbase+kd*kstride+groups[gi][0]*1024}')
        rdt(0)
        for gi, (ti, items) in enumerate(groups):
            if gi + 1 < len(groups): rdt(gi+1); a('s_waitcnt lgkmcnt(3)')
            else: a('s_waitcnt lgkmcnt(0)')
            st = TF + 12*(gi & 1); C, Sp, Sn = v(st,4), v(st+4,4), v(st+8,4)
            for (blk, oi, first) in items:
                dr, di = v(AR+16*blk,16), v(AI+16*blk,16); xr, xi = v(OPR+4*oi,4), v(OPI+4*oi,4)
                for (d, t, x, f0) in ((dr, C, xr, first), (di, C, xi, first), (dr, Sn if inverse else Sp, xi, False), (di, Sp if inverse else Sn, xr, False)):
                    A_, B_ = (x, t) if data_is_A else (t, x)
                    a(f'v_mfma_f32_32x32x16_bf16 {d}, {A_}, {B_}, {"0" if f0 else d}')
        a('s_nop 15')
    def cmul(blk, q, C, Sg, plus):
        R_, I_ = AR+16*blk+4*q, AI+16*blk+4*q
        ng = ' neg_lo:[0,1,0] neg_hi:[0,1,0]'
        for h in range(2):
            a(f'v_pk_mul_f32 {v(TM+2*h,2)}, {v(R_+2*h,2)}, {v(C+2*h,2)}\nv_pk_mul_f32 {v(TM+4+2*h,2)}, {v(I_+2*h,2)}, {v(C+2*h,2)}')
        for h in range(2):
            a(f'v_pk_fma_f32 {v(TM+2*h,2)}, {v(I_+2*h,2)}, {v(Sg+2*h,2)}, {v(TM+2*h,2)}{ng if plus else ""}')
            a(f'v_pk_fma_f32 {v(TM+4+2*h,2)}, {v(R_+2*h,2)}, {v(Sg+2*h,2)}, {v(TM+4+2*h,2)}{"" if plus else ng}')
        for h in range(2):
            a(f'v_cvt_pk_bf16_f32 v{OPR+8*blk+2*q+h}, v{TM+2*h}, v{TM+2*h+1}\nv_cvt_pk_bf16_f32 v{OPI+8*blk+2*q+h}, v{TM+4+2*h}, v{TM+5+2*h}')
    def twiddle(base, plus):
        def rd(i):
            st = TF + 8*(i & 1)
            a(f'ds_read_b128 {v(st,4)}, v{vL16} offset:{base+i*2048}\nds_read_b128 {v(st+4,4)}, v{vL16} offset:{base+i*2048+1024}')
        rd(0)
        for i in range(8):
            if i < 7: rd(i+1); a('s_waitcnt lgkmcnt(2)')
            else: a('s_waitcnt lgkmcnt(0)')
            st = TF + 8*(i & 1)
            cmul(i >> 2, i & 3, st, st+4, plus)
    g32 = [(ks, [(blk, 2*blk+ks, ks == 0) for blk in range(2)]) for ks in range(2)]
    g64 = [(4*blk+ks, [(blk, ks, ks == 0)]) for blk in range(2) for ks in range(4)]
    dft(g32, F_W32, 2048, False, True)
    twiddle(F_TW1, False)
    dft(g64, F_W64, 8192, False, False)
    a('s_waitcnt vmcnt(0)')
    for i in range(8):
        for b in range(4):
            a(f'v_lshlrev_b32 v{TF+b}, 16, v{FL+4*i+b}\nv_and_b32 v{TF+4+b}, 0xffff0000, v{FL+4*i+b}')
        cmul(i >> 2, i & 3, TF, TF+4, True)
    dft(g64, F_W64, 8192, True, True)
    twiddle(F_TW2, True)
    dft(g32, F_W32, 2048, True, False)
    a(f's_cmp_eq_u32 s{sP}, 0\ns_cbranch_scc1 {tag}_P2')
    for q in range(32): a(f'v_mov_b32 v{SV+q}, v{AR+q}')
    a(f's_mov_b32 s{sP}, 0\ns_branch {tag}_PASS\n{tag}_P2:')
    a(f's_cmp_lg_u32 s{sF}, 0\ns_cbranch_scc1 {tag}_P3')
    for q in range(32): a(f'v_mov_b32 v{AI+q}, v{SV+q}')
    a(f'{tag}_P3:\ns_barrier')
    for blk in range(2):
        for i in range(16):
            a(f'v_cvt_pk_bf16_f32 v{FL+16*blk+i}, v{AR+16*blk+i}, v{AI+16*blk+i}')
            a(f'ds_write_b32 v{vXW}, v{FL+16*blk+i} offset:{(8*(i>>2)+(i&3))*1024+blk*512}')
            if i % 8 == 7: a('s_waitcnt lgkmcnt(4)')
    a(f'''v_add_u32 v{vT}, s{sU2}, v{vL16}
    s_lshl_b32 s89, s{sTK}, 16
    s_lshl_b32 s90, s{sWv}, 13
    s_add_u32 s89, s89, s90
    s_add_u32 s89, s89, {Z_BASE}
    s_add_u32 s90, s89, 4096
    s_waitcnt lgkmcnt(0)
    s_barrier''')
    for i in range(8): a(f'ds_read_b128 {v(AR+4*i,4)}, v{vT} offset:{i*1024}')
    for i in range(8):
        a(f's_waitcnt lgkmcnt({7-i})\nbuffer_store_dwordx4 {v(AR+4*i,4)}, v{vL16}, {W}, s{89+(i>>2)} offen offset:{(i&3)*1024}{stflav}')

sFL, sK0, sNO, sSL = 92, 93, 94, 95
def out_addr(a, T, BN):
    a(f'''v_and_b32 v{T}, 31, v0
    v_lshlrev_b32 v{T}, 11, v{T}
    v_lshrrev_b32 v{T+1}, 5, v0
    v_lshl_add_u32 v{T}, v{T+1}, 4, v{T}''')

def gen_gemm2(a, tag, BN, done, ldflav=''):
    g = G; T = g.vT
    WM, WN = (2, 4) if BN == 256 else (4, 2)
    MT, NT = 256 // WM // 32, BN // WN // 32
    RPI = 512 // BN
    lg = {2: 1, 4: 2}[WN]
    for i in range(4): a(f's_mov_b32 s{g.XS+i}, s{WS+i}\ns_mov_b32 s{g.WSR+i}, s{WS+i}')
    a(f'''s_load_dwordx2 s[4:5], s[0:1], 40
    s_load_dwordx2 s[6:7], s[0:1], 88
    s_lshr_b32 s{g.sA}, s{sWv}, {lg}
    s_lshl_b32 s{sU0}, s{sRB}, 8
    s_mul_i32 s{sU1}, s{g.sA}, {MT*32}
    s_add_u32 s{sU0}, s{sU0}, s{sU1}
    s_waitcnt lgkmcnt(0)''')
    srd(a, TS, 6, 4*MB)
    a(f's_bitcmp1_b32 s{sFL}, 0\ns_cbranch_scc1 {tag}_DOZ')
    for q in range(16*MT*NT): a(f'v_mov_b32 v{g.ACC+q}, 0')
    a(f's_branch {tag}_NOZ\n{tag}_DOZ:')
    a(f'''s_lshl_b32 s{g.sXo}, s{sRB}, 12
    s_add_u32 s{g.sXo}, s{g.sXo}, {Z_BASE}
    s_mul_i32 s{g.sWo}, s{sCB}, {2*BN}
    s_add_u32 s{g.sWo}, s{g.sWo}, {FI_BASE}''')
    gemm_setup(a, BN, WM, WN, 'chunk', 32768, 2048, True)
    a(f'''s_lshl_b32 s{sU1}, s{sU0}, 2
    s_add_u32 s{sU1}, s{sU1}, {G_BASE+8192}
    v_and_b32 v3, 31, v0
    v_lshlrev_b32 v3, 2, v3''')
    for mt in range(MT): a(f'buffer_load_dword v{20+mt}, v3, {W}, s{sU1} offen offset:{mt*128}{ldflav}')
    acc = gemm_loop(a, tag+'_Z', BN, WM, WN, 'chunk', True, 16, 2*32768, 8*32768, 8*RPI*2048, 64*2048, ldflav=ldflav)
    for mt in range(MT):
        for nt in range(NT):
            for q in range(16): a(f'v_mul_f32 v{acc(mt,nt)+q}, v{20+mt}, v{acc(mt,nt)+q}')
    a(f'{tag}_NOZ:\ns_cmp_eq_u32 s{sNO}, 0\ns_cbranch_scc1 {tag}_EP')
    a(f'''s_lshl_b32 s{g.sXo}, s{sRB}, 21
    s_lshl_b32 s{sU1}, s{sK0}, 7
    s_add_u32 s{g.sXo}, s{g.sXo}, s{sU1}
    s_add_u32 s{g.sXo}, s{g.sXo}, {O_BASE}
    s_mul_i32 s{g.sWo}, s{sCB}, {2*BN}
    s_lshl_b32 s{sU1}, s{sK0}, 17
    s_add_u32 s{g.sWo}, s{g.sWo}, s{sU1}''')
    srd(a, g.WSR, 4, 8*MB)
    gemm_setup(a, BN, WM, WN, 'row', 8192, 2048, True)
    acc = gemm_loop(a, tag+'_O', BN, WM, WN, 'row', True, f's{sNO}', 64*8192, 128, 8*RPI*2048, 64*2048, zero=False, ldflav=ldflav)
    a(f'{tag}_EP:\ns_bitcmp1_b32 s{sFL}, 1\ns_cbranch_scc0 {tag}_PART')
    a(f'''s_lshl_b32 s{sU0}, s{sU0}, 11
    s_mul_i32 s{sU1}, s{sCB}, {2*BN}
    s_add_u32 s{sU0}, s{sU0}, s{sU1}
    s_lshl_b32 s{sU1}, s{g.sB}, 7
    s_add_u32 s{sU0}, s{sU0}, s{sU1}''')
    out_addr(a, T, BN)
    n = 0
    for mt in range(MT):
        for nt in range(NT):
            for h in range(2):
                p = g.FR + 4 * (n % 8); n += 1
                for j in range(4): a(f'v_cvt_pk_bf16_f32 v{p+j}, v{acc(mt,nt)+8*h+2*j}, v{acc(mt,nt)+8*h+2*j+1}')
                a(f'buffer_store_dwordx4 {v(p,4)}, v{T}, s[{TS}:{TS+3}], s{sU0} offen offset:{nt*64+h*32}')
        a(f's_add_u32 s{sU0}, s{sU0}, {32*2048}')
    a(f's_branch {done}\n{tag}_PART:')
    NQ = 4*MT*NT
    a(f's_mul_i32 s{sU0}, s{sWv}, {NQ*1024}\ns_add_u32 s{sU0}, s{sU0}, s{sSL}\nv_lshlrev_b32 v{T}, 4, v0')
    for q in range(NQ):
        a(f'buffer_store_dwordx4 {v(g.ACC+4*q,4)}, v{T}, {W}, s{sU0} offen offset:{(q&3)*1024} sc1')
        if q & 3 == 3: a(f's_add_u32 s{sU0}, s{sU0}, 4096')
    a(f's_branch {done}')

def gen_reduce(a, tag, done, maxparts=17):
    a(f's_load_dwordx2 s[6:7], s[0:1], 88\nv_lshlrev_b32 v1, 4, v0\ns_add_u32 s{sK0}, s{sK0}, s{sWv}')
    out_addr(a, 2, 128)
    a('s_waitcnt lgkmcnt(0)')
    srd(a, TS, 6, 4*MB)
    B = 112
    a(f'{tag}_L:\ns_lshl_b32 s{sU0}, s{sK0}, 11\ns_add_u32 s{sU0}, s{sU0}, s{sSL}')
    for p in range(maxparts):
        if p >= 2: a(f's_cmp_le_u32 s{sFL}, {p}\ns_cbranch_scc1 {tag}_LD')
        a(f'buffer_load_dwordx4 {v(B+8*p,4)}, v1, {W}, s{sU0} offen sc1\nbuffer_load_dwordx4 {v(B+8*p+4,4)}, v1, {W}, s{sU0} offen offset:1024 sc1')
        a(f's_add_u32 s{sU0}, s{sU0}, {128*1024}')
    a(f'''{tag}_LD:
    s_lshl_b32 s{sU0}, s{sRB}, 19
    s_lshr_b32 s{sU1}, s{sK0}, 4
    s_lshl_b32 s{sU1}, s{sU1}, 17
    s_add_u32 s{sU0}, s{sU0}, s{sU1}
    s_and_b32 s{sU1}, s{sK0}, 4
    s_lshl_b32 s{sU1}, s{sU1}, 14
    s_add_u32 s{sU0}, s{sU0}, s{sU1}
    s_lshl_b32 s{sU1}, s{sCB}, 8
    s_add_u32 s{sU0}, s{sU0}, s{sU1}
    s_and_b32 s{sU1}, s{sK0}, 8
    s_lshl_b32 s{sU1}, s{sU1}, 4
    s_add_u32 s{sU0}, s{sU0}, s{sU1}
    s_and_b32 s{sU1}, s{sK0}, 3
    s_lshl_b32 s{sU1}, s{sU1}, 5
    s_add_u32 s{sU0}, s{sU0}, s{sU1}
    s_waitcnt vmcnt(0)''')
    for p in range(1, maxparts):
        if p >= 2: a(f's_cmp_le_u32 s{sFL}, {p}\ns_cbranch_scc1 {tag}_AD')
        for q in range(0, 8, 2): a(f'v_pk_add_f32 {v(B+q,2)}, {v(B+q,2)}, {v(B+8*p+q,2)}')
    a(f'{tag}_AD:')
    for j in range(4): a(f'v_cvt_pk_bf16_f32 v{8+j}, v{B+2*j}, v{B+2*j+1}')
    a(f'''buffer_store_dwordx4 v[8:11], v2, s[{TS}:{TS+3}], s{sU0} offen
    s_add_u32 s{sK0}, s{sK0}, 8
    s_sub_u32 s{sNO}, s{sNO}, 1
    s_cmp_lg_u32 s{sNO}, 0
    s_cbranch_scc1 {tag}_L
    s_branch {done}''')
```

```python
from asmlib import *
from layout import *
import math, struct

def f2u(f): return struct.unpack('<I', struct.pack('<f', f))[0]

WS = 8; TS = 12; DBG = 16
sRHO, sX, sC, sGQ, sW, sSTEP, sBUD = 20, 21, 22, 23, 24, 25, 26
sO1, sO2, sO3, sO4, sO5, sO6 = 27, 28, 29, 30, 32, 23
sT0, sKV, sKVM, sP0, sP1, sT1, sT2 = 33, 34, 35, 36, 37, 38, 39
sSC, sSELLO, sSELHI, sI16 = 40, 31, 42, 43
sWSB = 44
sWARM = 46
sJ = 48
sPW = 49
sLD = 50
sMODE = 51
sST = 56

LDS_P = 0
LDS_W = 12288
LDS_F = 16384
LDS_V = 20480

def srd(a, d, base, nbytes):
    a(f's_mov_b32 s{d}, s{base}\ns_and_b32 s{d+1}, s{base+1}, 0xffff\ns_mov_b32 s{d+2}, {nbytes}\ns_mov_b32 s{d+3}, 0x20000')

def slot(a, dst, add, shift, base):
    if add: a(f's_add_u32 s{dst}, s{sSTEP}, {add}\ns_and_b32 s{dst}, s{dst}, 3')
    else: a(f's_and_b32 s{dst}, s{sSTEP}, 3')
    a(f's_lshl_b32 s{dst}, s{dst}, {shift}\ns_add_u32 s{dst}, s{dst}, s{base}')
SH_B1, SH_B2, SH_A = 18, 17, 18
B2_OFF, O_OFF = 1024*1024, 1536*1024

def budget(a, out):
    a(f's_sub_u32 s{sBUD}, s{sBUD}, 1\ns_cbranch_scc1 {out}')

def make_sel(a, SEL, vE, t0, t1):
    a(f'''v_and_b32 v{t0}, 1, v{vE}
    v_lshlrev_b32 v{t0}, 4, v{t0}
    v_mov_b32 v{t1}, 0x3f80
    v_lshlrev_b32 v{t0}, v{t0}, v{t1}
    v_lshrrev_b32 v{t1}, 1, v{vE}''')
    for r in range(4):
        a(f'v_cmp_eq_u32 vcc, {r}, v{t1}\ns_nop 1\nv_cndmask_b32 v{SEL+r}, 0, v{t0}, vcc')

def gather_fsm(a, tag, n, load, regs, consume, vA, vB, done, on_fail, dup_nops=10, first_ts=None, last_ts=None, mult=1, vQ=None):
    name = lambda q: f'{tag}_S' + ''.join(map(str, q))
    emitted = set(); todo = []; fails = []; tramps = []
    def want(q):
        if q not in emitted and q not in todo: todo.append(q)
        return name(q)
    def quick(k):
        if mult == 1: return [f'v_cmp_eq_u32 vcc, -1, v{regs(k)+3}']
        return [f'v_max_u32 v{vQ}, v{regs(k)+3}, v{regs(k)+7}', f'v_cmp_eq_u32 vcc, -1, v{vQ}']
    def test(q):
        return [f's_waitcnt vmcnt({mult*(len(q)-1)})'] + quick(q[0])
    def head(q):
        a(f'{name(q)}:'); a('\n'.join(test(q))); a(f's_cbranch_vccnz {name(q)}_F')
    def accs(k, first, A, B):
        out = []
        for j in range(mult):
            r = regs(k) + 4*j
            if first and j == 0: out.append(f'v_max_u32 v{A}, v{r}, v{r+1}\nv_max_u32 v{B}, v{r+2}, v{r+3}')
            else: out.append(f'v_max3_u32 v{A}, v{A}, v{r}, v{r+1}\nv_max3_u32 v{B}, v{B}, v{r+2}, v{r+3}')
        return out
    def ok(q, fall):
        emitted.add(q); fails.append(q)
        k = q[0]; first = len(q) == n
        a(f'{name(q)}_OK:')
        if first and first_ts: first_ts()
        if len(q) == 1 and last_ts: last_ts()
        m = consume(k, first); ac = accs(k, first, vA, vB)
        rest_ = q[1:]
        if not rest_:
            for i, x in enumerate(m):
                a(x)
                if i < len(ac): a(ac[i])
            if not fall: a(f's_branch {done}')
            return
        want(rest_)
        a(m[0]); a('\n'.join(test(rest_))); a(m[1]); a(ac[0]); a(m[2])
        a(f's_cbranch_vccnz {name(q)}_T')
        tail = '\n'.join(m[3:] + ac[1:])
        a(tail)
        tramps.append((q, tail))
        if not fall: a(f's_branch {name(rest_)}_OK')
    q = tuple(range(n))
    head(q); main = []
    while q:
        ok(q, True); main.append(q); q = q[1:]
    def rest():
        for q in main[1:]:
            if len(q) > 1: head(q); a(f's_branch {name(q)}_OK')
        while fails or todo or tramps:
            while tramps:
                q, tail = tramps.pop(0)
                a(f'{name(q)}_T:'); a(tail); a(f's_branch {name(q[1:])}_F')
            while fails:
                q = fails.pop(0); k = q[0]
                a(f'{name(q)}_F:'); load(k); on_fail(n - len(q))
                if len(q) > 1:
                    a(f's_branch {want(q[1:] + q[:1])}')
                else:
                    for _ in range(3):
                        a(f's_nop {dup_nops}'); load(k)
                    a(f'{name(q)}_L:\ns_waitcnt vmcnt({3*mult})')
                    r = regs(k)
                    a(f'v_max3_u32 v{vQ}, v{r}, v{r+1}, v{r+2}')
                    for j in range(3, 4*mult - 1, 2): a(f'v_max3_u32 v{vQ}, v{vQ}, v{r+j}, v{r+j+1}')
                    a(f'v_max_u32 v{vQ}, v{vQ}, v{r+4*mult-1}\nv_cmp_eq_u32 vcc, -1, v{vQ}\ns_cbranch_vccz {name(q)}_OK')
                    load(k); on_fail(n)
                    a(f's_branch {name(q)}_L')
            if todo:
                q = todo.pop(0)
                if q not in emitted:
                    if len(q) > 1: head(q)
                    ok(q, False)
    return rest

def gen_rec(a, opt):
    DUAL = opt.get('intra', 'dual') == 'dual'
    LIN = ' sc1' if opt.get('intra') == 'sc1' else ''
    EXIT = opt['exit']
    MEGA = opt.get('mega', False)
    NEXT = opt.get('next', EXIT)
    NSTEP = opt.get('nstep', 64)
    TL = opt.get('timeline', False)
    W = f's[{WS}:{WS+3}]'
    NST = 16
    def get_pages(lbl, t):
        if not MEGA: return
        a(f'{lbl}:\nbuffer_load_dwordx2 v[{t}:{t+1}], off, s[{DBG}:{DBG+3}], 0 offset:72 sc1')
        budget(a, EXIT)
        a(f's_waitcnt vmcnt(0)\nv_cmp_eq_u32 vcc, 0, v{t}\ns_cbranch_vccnz {lbl}\nv_cmp_eq_u32 vcc, 0, v{t+1}\ns_cbranch_vccnz {lbl}')
        a(f'v_readfirstlane_b32 s{sP0}, v{t}\nv_readfirstlane_b32 s{sP1}, v{t+1}\ns_nop 3\ns_sub_u32 s{sP0}, s{sP0}, 1\ns_sub_u32 s{sP1}, s{sP1}, 1')
    def kv_wait(lbl, t):
        a(f's_mul_i32 s{sT2}, s{sX}, {KV_GS}\ns_add_u32 s{sT1}, s{sT1}, s{sT2}\ns_lshl_b32 s{sT1}, s{sT1}, 7\ns_add_u32 s{sT1}, s{sT1}, {CNT_BASE + C_KV*128}')
        a(f'{lbl}:\nbuffer_load_dword v{t}, off, {W}, s{sT1} sc1')
        budget(a, EXIT)
        a(f's_waitcnt vmcnt(0)\nv_cmp_gt_u32 vcc, {KV_TARGET}, v{t}\ns_cbranch_vccz {lbl}_OK\ns_sleep 2\ns_branch {lbl}\n{lbl}_OK:')
    def ts(i):
        if TL: a(f's_memtime s[{sST+2*i}:{sST+2*i+1}]')
    def rt(i):
        if TL: a(f's_memrealtime s[4:5]\ns_waitcnt lgkmcnt(0)\ns_mov_b32 s{sST+2*NST+8+i}, s4')
    def cnt(i):
        if TL: a(f's_add_u32 s{sST+2*NST+i}, s{sST+2*NST+i}, 1')
    def tl_dump(lbl, tmp):
        if TL:
            a(f's_cmp_lg_u32 s{sSTEP}, {TL+1}\ns_cbranch_scc1 {lbl}')
            dump(0, NST, 2, 0, tmp)
            a(f'{lbl}:')
    def dump(first, n, stride, slot0, tmp):
        a(f's_waitcnt lgkmcnt(0)\ns_lshl_b32 s{sT0}, s{sRHO}, 3\ns_add_u32 s{sT0}, s{sT0}, s{sW}\ns_lshl_b32 s{sT0}, s{sT0}, 7\ns_add_u32 s{sT0}, s{sT0}, {STAMP_BASE}')
        for i in range(n):
            a(f'v_mov_b32 v{tmp}, s{sST+first+stride*i}\nbuffer_store_dword v{tmp}, off, {W}, s{sT0} offset:{4*(slot0+i)}')
        a('s_waitcnt vmcnt(0)')
    def kvm_half(r):
        return f's_lshr_b32 s{sT0}, s{r}, 8\ns_xor_b32 s{sT0}, s{sT0}, s{sP0}\ns_and_b32 s{sT0}, s{sT0}, 0x2000\ns_add_u32 s{sT0}, s{sT0}, s{r}\n'
    def sleep(key, dflt=0):
        d = opt.get(key, dflt)
        if d: a(f's_sleep {d}')
    def nops(key, dflt=0):
        d = opt.get(key, dflt) if isinstance(key, str) else key
        while d > 0:
            a(f's_nop {min(d,16)-1}'); d -= 16
    vIDX, vGR, vLW, vLR, vCH, vT = 1, 2, 3, 4, 5, 6
    SEL = 16; RDD = 20; AM = 24; ACC = 40
    vI, vG, vT2 = AM+4, AM+5, AM+6
    a(f"""v_lshrrev_b32 v1, 6, v0
    v_and_b32 v0, 63, v0
    s_lshr_b32 s{sX}, s{sRHO}, 5
    v_readfirstlane_b32 s{sW}, v1
    s_and_b32 s{sC}, s{sRHO}, 31
    s_mov_b32 s{sSTEP}, 0
    s_mov_b32 s{sBUD}, {opt.get('budget', 2000000)}
    s_mov_b32 s{sSC}, {f2u(128**-0.5 * math.log2(math.e))}
    s_mov_b32 s{sSC+1}, {f2u(-128**-0.5 * math.log2(math.e))}
    s_mov_b32 s{sSELLO}, 0x05040100
    s_mov_b32 s{sSELHI}, 0x07060302
    s_and_b32 s{sPW}, s{sW}, 3
    v_and_b32 v{vI}, 15, v0
    v_lshrrev_b32 v{vG}, 4, v0
    v_mov_b32 v{vIDX}, 0x4444
    v_mov_b32 v{vT}, 0xeeee
    v_cmp_lt_u32 vcc, 7, v{vI}
    s_nop 1
    v_cndmask_b32 v{vIDX}, v{vIDX}, v{vT}, vcc""")
    if TL:
        for i in range(2*NST+12): a(f's_mov_b32 s{sST+i}, 0')
    a(f"""v_and_b32 v{vT}, 1, v{vG}
    v_lshlrev_b32 v{vT}, 2, v{vT}
    v_lshrrev_b32 v{vT2}, 1, v{vG}
    v_lshl_add_u32 v{vT}, v{vT2}, 4, v{vT}
    s_lshl_b32 s{sT0}, s{sPW}, 8
    v_add_u32 v{vT}, s{sT0}, v{vT}""")
    def load_w(reg, stride, nk=4):
        for k in range(nk):
            for b in range(8):
                row = 64*k + 32*(b>>2) + 8*(b&1) + 2*((b>>1)&1)
                a(f's_mov_b32 s{sT0}, {row*stride}\ns_mov_b32 s{sT1}, {(row+1)*stride}')
                a(f'buffer_load_dword v{reg(0,k)+b}, v{vT}, s[{TS}:{TS+3}], s{sT0} offen')
                a(f'buffer_load_dword v{reg(1,k)+b}, v{vT}, s[{TS}:{TS+3}], s{sT1} offen')
            a('s_waitcnt vmcnt(44)')
    def perm_w(reg, nk=4):
        for k in range(nk):
            for b in range(8):
                x0, x1 = reg(0,k)+b, reg(1,k)+b
                a(f'v_perm_b32 v{vT}, v{x1}, v{x0}, s{sSELLO}\nv_perm_b32 v{x1}, v{x1}, v{x0}, s{sSELHI}\nv_mov_b32 v{x0}, v{vT}')
    def common_addrs(goff):
        a(f"""s_lshl_b32 s{sT0}, s{sX}, 1
        s_lshr_b32 s{sT1}, s{sPW}, 1
        s_add_u32 s{sT0}, s{sT0}, s{sT1}
        s_lshl_b32 s{sT0}, s{sT0}, 14
        s_and_b32 s{sT1}, s{sPW}, 1
        s_lshl_b32 s{sT1}, s{sT1}, 12
        s_add_u32 s{sT0}, s{sT0}, s{sT1}
        s_add_u32 s{sT0}, s{sT0}, {goff}
        v_lshl_add_u32 v{vGR}, v0, 4, s{sT0}""")
        a(f"""v_and_b32 v{vT2}, 1, v{vG}
        v_lshlrev_b32 v{vLW}, 11, v{vT2}
        v_lshrrev_b32 v{vT2}, 1, v{vG}
        v_lshl_add_u32 v{vLW}, v{vT2}, 8, v{vLW}
        v_lshl_add_u32 v{vLW}, v{vI}, 4, v{vLW}
        s_lshl_b32 s{sT0}, s{sPW}, 9
        v_add_u32 v{vLW}, s{sT0}, v{vLW}""")
        a(f"""v_lshrrev_b32 v{vT2}, 2, v{vI}
        v_lshlrev_b32 v{vT2}, 1, v{vT2}
        v_and_b32 v{vCH}, 1, v{vI}
        v_add_u32 v{vT2}, v{vT2}, v{vCH}
        v_and_b32 v{vCH}, 2, v{vI}
        v_lshl_add_u32 v{vT2}, v{vCH}, 2, v{vT2}""")
        make_sel(a, SEL, vT2, vCH, RDD)
        a(f"""s_lshr_b32 s{sO1}, s{sRHO}, 4
        s_lshl_b32 s{sO1}, s{sO1}, 14
        s_and_b32 s{sT1}, s{sRHO}, 15
        s_lshl_b32 s{sT1}, s{sT1}, 9
        s_add_u32 s{sO1}, s{sO1}, s{sT1}
        s_lshr_b32 s{sO2}, s{sRHO}, 3
        s_lshl_b32 s{sO2}, s{sO2}, 14
        s_and_b32 s{sT1}, s{sRHO}, 4
        s_lshl_b32 s{sT1}, s{sT1}, 10
        s_add_u32 s{sO2}, s{sO2}, s{sT1}""")
    getmode = lambda t: a(f'v_mov_b32 v{t}, {LDS_F}\nds_read_b32 v{t}, v{t}\ns_waitcnt lgkmcnt(0)\nv_readfirstlane_b32 s{sMODE}, v{t}\ns_nop 3')
    def rd2(dst, off):
        for q in range(2): a(f'ds_read_b128 {v(dst+4*q,4)}, v{vLR} offset:{off + q*1024}')
    def red2(src):
        a(f's_waitcnt lgkmcnt(1)\nv_mfma_f32_16x16x32_bf16 {v(RDD,4)}, {v(SEL,4)}, {v(src,4)}, 0')
        a(f's_waitcnt lgkmcnt(0)\nv_mfma_f32_16x16x32_bf16 {v(RDD,4)}, {v(SEL,4)}, {v(src+4,4)}, {v(RDD,4)}')
    a(f's_cmp_lt_u32 s{sW}, 4\ns_cbranch_scc1 R_Q')

    a.c('================ q/k/v projection waves ================')
    rt(0)
    vAT, vARM, vFR, vTK = 7, 8, 9, 10
    vSEN = 12; W1 = 64
    acc = lambda m, t: ACC + (m*2+t)*4
    w1 = lambda m, t, k: W1 + (k*6 + m*2 + t)*8
    a(f"""v_lshlrev_b32 v{vT}, 13, v{vT}
    v_lshl_add_u32 v{vT}, v{vI}, 2, v{vT}
    s_lshl_b32 s{sT1}, s{sRHO}, 6
    v_add_u32 v{vT}, s{sT1}, v{vT}""")
    for m in range(3):
        a(f's_load_dwordx2 s[4:5], s[0:1], {16+8*m}\ns_waitcnt lgkmcnt(0)')
        srd(a, TS, 4, 8*MB)
        load_w(lambda t, k: w1(m, t, k), 8192)
    for r in range(4): a(f'v_mov_b32 v{vSEN+r}, -1')
    common_addrs(B2_OFF)
    a(f"""s_and_b32 s{sT1}, s{sRHO}, 3
    s_lshl_b32 s{sT1}, s{sT1}, 10
    s_add_u32 s{sO2}, s{sO2}, s{sT1}
    s_lshl_b32 s{sT2}, s{sPW}, 6
    s_add_u32 s{sT2}, s{sT2}, s{sO2}
    v_lshl_add_u32 v{vAT}, v{vG}, 4, s{sT2}
    v_lshrrev_b32 v{vT2}, 2, v{vI}
    v_lshl_add_u32 v{vAT}, v{vT2}, 8, v{vAT}
    v_and_b32 v{vT2}, 3, v{vI}
    v_lshl_add_u32 v{vAT}, v{vT2}, 2, v{vAT}
    s_lshl_b32 s{sT0}, s{sPW}, 11
    v_lshl_add_u32 v{vLR}, v0, 4, s{sT0}""")
    a(f"""v_lshl_add_u32 v{vARM}, v0, 4, s{sO2}
    s_cmp_eq_u32 s{sPW}, 1
    s_cbranch_scc0 RP_A2
    v_and_b32 v{vT2}, 31, v0
    v_lshl_add_u32 v{vARM}, v{vT2}, 4, s{sO1}
    v_lshrrev_b32 v{vT2}, 5, v0
    v_lshl_add_u32 v{vARM}, v{vT2}, 19, v{vARM}
    v_add_u32 v{vARM}, {B2_OFF}, v{vARM}
RP_A2:""")
    assert O_OFF - B2_OFF == 1 << 19
    SEN = v(vSEN, 4)
    get_pages('RP_PG', AM)
    a(f's_cmp_ge_u32 s{sPW}, 2\ns_cbranch_scc1 RP_I4\ns_cmp_eq_u32 s{sPW}, 1\ns_cbranch_scc1 RP_I2')
    for sl in range(4):
        a(f's_add_u32 s{sT0}, s{sP1}, {sl << SH_A}\nbuffer_store_dwordx4 {SEN}, v{vARM}, {W}, s{sT0} offen sc1')
    a('s_branch RP_I4\nRP_I2:')
    for sl in range(1, 4):
        a(f's_add_u32 s{sT0}, s{sP0}, {sl << SH_B2}\nbuffer_store_dwordx4 {SEN}, v{vARM}, {W}, s{sT0} offen sc1')
    a(f"""s_load_dwordx2 s[4:5], s[0:1], 8
    v_and_b32 v{vT2}, 7, v0
    v_lshlrev_b32 v{vT2}, 11, v{vT2}
    v_bfe_u32 v{vCH}, v0, 3, 2
    v_lshl_add_u32 v{vT2}, v{vCH}, 4, v{vT2}
    s_lshl_b32 s{sT0}, s{sC}, 6
    v_cmp_gt_u32 vcc, 32, v0
    s_waitcnt lgkmcnt(0)""")
    srd(a, TS, 4, 16384)
    a(f'buffer_load_dwordx4 {v(AM,4)}, v{vT2}, s[{TS}:{TS+3}], s{sT0} offen\ns_waitcnt vmcnt(0)')
    for r in range(4): a(f'v_min_u32 v{AM+r}, -2, v{AM+r}\nv_cndmask_b32 v{AM+r}, -1, v{AM+r}, vcc')
    a(f'buffer_store_dwordx4 {v(AM,4)}, v{vARM}, {W}, s{sP0} offen sc1')
    a('RP_I4:\ns_waitcnt vmcnt(0)')
    rt(1)
    for m in range(3): perm_w(lambda t, k: w1(m, t, k))
    WA = opt.get('warm_ahead', 2)
    a(f"""s_lshl_b32 s{sT0}, s{sRHO}, 12
    s_lshl_b32 s{sT1}, s{sPW}, 10
    s_add_u32 s{sT0}, s{sT0}, s{sT1}
    s_add_u32 s{sT0}, s{sT0}, {KV_BASE + WA*32*16384}
    s_add_u32 s{sWARM}, s{sWSB}, s{sT0}
    s_addc_u32 s{sWARM+1}, s{sWSB+1}, 0
    v_mov_b32 v{vFR}, 0
    s_lshr_b32 s{sKVM}, s{sRHO}, 3
    s_lshl_b32 s{sKVM}, s{sKVM}, 14
    s_and_b32 s{sT1}, s{sRHO}, 4
    s_mul_i32 s{sT1}, s{sT1}, 3072
    s_add_u32 s{sKVM}, s{sKVM}, s{sT1}
    s_add_u32 s{sKVM}, s{sKVM}, {KVM_BASE}
    s_barrier""")
    a(f's_cmp_lg_u32 s{sPW}, 0\ns_cbranch_scc1 RP_INITDONE')
    a(f"""v_mov_b32 v{vT}, 1
    s_mov_b64 exec, 1
    buffer_atomic_add v{vT}, off, s[{DBG}:{DBG+3}], 0 offset:64 sc1
    s_mov_b64 exec, -1
RP_INITW:
    buffer_load_dwordx2 v[{AM}:{AM+1}], off, s[{DBG}:{DBG+3}], 0 offset:64 sc1""")
    budget(a, EXIT)
    a(f"""s_waitcnt vmcnt(0)
    v_cmp_gt_u32 vcc, 128, v{AM}
    s_cbranch_vccnz RP_INITW
    v_mov_b32 v{vCH}, {LDS_F}
    ds_write_b32 v{vCH}, v{AM+1}
    s_waitcnt lgkmcnt(0)
RP_INITDONE:""")
    sB2C, sAC, sARM = sO1, sO2, sO3
    def p_slots():
        slot(a, sB2C, 0, SH_B2, sP0); slot(a, sAC, 0, SH_A, sP1)
    p_slots()
    a('s_barrier')
    getmode(vT)
    rt(2)
    def p_loop(Z, IN):
        a(f'RP{Z}_LOOP:')
        ts(0)
        nops('b2_nops', 16)
        a(f'RP{Z}_RETRY:')
        ldg = lambda k: a(f'buffer_load_dwordx4 {v(AM+4*k,4)}, v{vGR}, {W}, s{sB2C} offen offset:{k*1024} sc1')
        sms = lambda m, t, k: f'v_smfmac_f32_16x16x64_bf16 {v(acc(m,t),4)}, {v(AM+4*k,4)}, {v(w1(m,t,k),8)}, v{vIDX}'
        sm = lambda m, t, k: a(sms(m, t, k))
        for k in range(4):
            ldg(k)
            if k < 3:
                for r in range(8): a(f'v_mov_b32 v{ACC+8*k+r}, 0')
                nops('gap', 6)
        def fail(i): cnt(i); budget(a, EXIT)
        rest = gather_fsm(a, f'RPG{Z}', 4, ldg, lambda k: AM+4*k, lambda k, f: [sms(0,0,k), sms(0,1,k), sms(1,0,k), sms(1,1,k)],
                          vCH, vT, f'RPG{Z}_DONE', fail, first_ts=lambda: ts(1), last_ts=lambda: ts(2), vQ=11)
        a(f'RPG{Z}_DONE:\nv_max_u32 v{vCH}, v{vCH}, v{vT}\nv_cmp_eq_u32 vcc, -1, v{vCH}')
        def post(m, pk):
            for r in range(4): a(f'v_cvt_pk_bf16_f32 v{pk+r}, v{acc(m,0)+r}, v{acc(m,1)+r}')
            a(f'ds_write_b128 v{vLW}, {v(pk,4)} offset:{LDS_P + m*4096}')
        ts(3)
        post(0, acc(0,0))
        a(f's_cbranch_vccnz RP{Z}_RX')
        sm(2,0,0)
        post(1, acc(1,0))
        ts(4)
        sm(2,1,0); sm(2,0,1); sm(2,1,1)
        a('s_waitcnt lgkmcnt(0)')
        ts(5)
        a('s_barrier')
        rd2(ACC, LDS_P)
        ts(6)
        red2(ACC)
        sm(2,0,2); sm(2,1,2)
        a('s_nop 1')
        a(f'v_cvt_pk_bf16_f32 v{vTK}, v{RDD}, v{RDD+1}\nv_min_u32 v{vTK}, -2, v{vTK}')
        a(f'buffer_store_dword v{vTK}, v{vAT}, {W}, s{sAC} offen{IN}')
        ts(7)
        sm(2,0,3); sm(2,1,3)
        a('s_nop 7')
        post(2, acc(1,0))
        a('s_waitcnt lgkmcnt(0)')
        a('s_barrier')
        ts(8)
        if TL: a(f's_mov_b32 m0, s{sSTEP}\nv_writelane_b32 v{vFR}, s{sST}, m0')
        slot(a, sARM, 3, SH_A, sP1); slot(a, sT0, 3, SH_B2, sP0)
        a(f's_cmp_eq_u32 s{sPW}, 1\ns_cselect_b32 s{sARM}, s{sT0}, s{sARM}')
        a(f's_add_u32 s{sSTEP}, s{sSTEP}, 1')
        p_slots()
        CPY = kvm_half(sKVM) + f'buffer_store_dword v{vTK}, v{vAT}, {W}, s{sT0} offen sc1\ns_add_u32 s{sKVM}, s{sKVM}, {32*UNIT}'
        a(f's_cmp_ge_u32 s{sSTEP}, {NSTEP}\ns_cbranch_scc1 RP{Z}_FIN')
        J2 = opt.get('junk', 1) == 2
        a('s_barrier')
        if J2: a('s_barrier\ns_barrier')
        a(f's_cmp_ge_u32 s{sPW}, 2\ns_cbranch_scc1 RP{Z}_NOARM')
        a(f'buffer_store_dwordx4 {SEN}, v{vARM}, {W}, s{sARM} offen{IN}\ns_branch RP{Z}_NOCP')
        a(f'RP{Z}_NOARM:')
        if not opt.get('nocopy'): a(CPY)
        a(f'RP{Z}_NOCP:')
        if opt.get('warm', False) or MEGA:
            a(f's_cmp_ge_u32 s{sSTEP}, {NSTEP-WA+1}\ns_cbranch_scc1 RP{Z}_NOWARM')
            if MEGA:
                a(f's_add_u32 s{sT1}, s{sSTEP}, {WA-1}\ns_and_b32 s{sT2}, s{sT1}, {KV_SEGS-1}\ns_cbranch_scc1 RP{Z}_KV_OK\ns_lshr_b32 s{sT1}, s{sT1}, {KV_SEGS.bit_length()-1}')
                kv_wait(f'RP{Z}_KV', vT)
            if opt.get('warm', False):
                for q in range(8):
                    a(f's_load_dword s{sJ}, s[{sWARM}:{sWARM+1}], {q*128}')
                a(f's_add_u32 s{sWARM}, s{sWARM}, {32*16384}\ns_addc_u32 s{sWARM+1}, s{sWARM+1}, 0')
        a(f'RP{Z}_NOWARM:')
        ts(9)
        a('s_barrier' if J2 else 's_barrier\ns_barrier\ns_barrier')
        tl_dump(f'RP{Z}_TL', vT)
        a(f's_branch RP{Z}_LOOP')
        a(f'RP{Z}_FIN:\ns_cmp_lt_u32 s{sPW}, 2\ns_cbranch_scc1 RP_END')
        a(CPY)
        a('s_waitcnt vmcnt(0)\ns_branch RP_END')
        a(f'RP{Z}_RX:'); budget(a, EXIT)
        a(f's_waitcnt vmcnt(0) lgkmcnt(0)\ns_nop 4\ns_branch RP{Z}_RETRY')
        rest()
    if DUAL:
        a(f's_cmp_lg_u32 s{sMODE}, 0\ns_cbranch_scc1 RPs_LOOP')
        p_loop('f', ''); p_loop('s', ' sc1')
    else: p_loop('', LIN)
    a('RP_END:')
    rt(3)
    if TL:
        a(f's_lshl_b32 s{sT0}, s{sRHO}, 2\ns_add_u32 s{sT0}, s{sT0}, s{sPW}\ns_lshl_b32 s{sT0}, s{sT0}, 8\ns_add_u32 s{sT0}, s{sT0}, {STAMP_BASE + 512*1024}')
        a(f'v_lshlrev_b32 v{vT}, 2, v0\nbuffer_store_dword v{vFR}, v{vT}, {W}, s{sT0} offen')
        dump(2*NST, 12, 1, 16, vT)
    a(f's_barrier\ns_branch {NEXT}')

    a.c('================ attention + Wo waves ================')
    a('R_Q:')
    vTR, vOW, vKV, vB1W, vB1R, vB2W, vM, vM2, vCP = 7, 8, 9, 10, 11, 12, 13, 14, 15
    WO = 128; wo = lambda t, k: WO + (k*2 + t)*8
    OG, BD, BO = 48, 80, 88
    T, S, KX, VX, VM, PX, PM, ONES, CM, OD, LD, OP = 48, 64, 128, 160, 100, 168, 172, 176, 180, 184, 192, 196
    SV, VR, VD = 128, 144, 160
    a(f"""s_add_u32 s{sT0}, s{sPW}, 1
    s_bitcmp1_b32 s{sT0}, 1
    s_cbranch_scc0 RQ_NW
    s_load_dwordx2 s[4:5], s[0:1], 40
    v_and_b32 v{vT}, 31, v{vT}
    v_lshlrev_b32 v{vT}, 11, v{vT}
    v_lshl_add_u32 v{vT}, v{vI}, 2, v{vT}
    s_lshl_b32 s{sT0}, s{sX}, 21
    s_lshl_b32 s{sT1}, s{sC}, 6
    s_add_u32 s{sT0}, s{sT0}, s{sT1}
    s_and_b32 s{sT1}, s{sPW}, 1
    s_lshl_b32 s{sT1}, s{sT1}, 20
    s_add_u32 s{sT0}, s{sT0}, s{sT1}
    v_add_u32 v{vT}, s{sT0}, v{vT}
    s_waitcnt lgkmcnt(0)""")
    srd(a, TS, 4, 8*MB)
    load_w(wo, 2048, 8)
    a('RQ_NW:')
    common_addrs(O_OFF)
    a(f"""s_and_b32 s{sT2}, s{sPW}, 1
    s_lshl_b32 s{sT0}, s{sX}, 1
    s_add_u32 s{sT0}, s{sT0}, s{sT2}
    s_lshl_b32 s{sT0}, s{sT0}, 14
    s_add_u32 s{sT0}, s{sT0}, {O_OFF}
    v_lshl_add_u32 v{vGR}, v0, 4, s{sT0}
    s_lshl_b32 s{sT0}, s{sT2}, 11
    v_lshl_add_u32 v{vLR}, v0, 4, s{sT0}
    v_lshl_add_u32 v{vTR}, v0, 4, s{sO2}
    v_and_b32 v{vT2}, 7, v0
    v_lshl_add_u32 v{vOW}, v{vT2}, 4, s{sO1}
    v_lshl_add_u32 v{vOW}, v{vG}, 7, v{vOW}
    v_add_u32 v{vOW}, {O_OFF}, v{vOW}
    s_lshr_b32 s{sT0}, s{sRHO}, 2
    s_lshl_b32 s{sT0}, s{sT0}, 14
    v_lshl_add_u32 v{vKV}, v0, 4, s{sT0}""")
    a(f"""s_lshr_b32 s{sT0}, s{sC}, 1
    s_lshl_b32 s{sT0}, s{sT0}, 14
    s_and_b32 s{sT1}, s{sC}, 1
    s_lshl_b32 s{sT1}, s{sT1}, 12
    s_add_u32 s{sT0}, s{sT0}, s{sT1}
    v_add_u32 v{vB1R}, s{sT0}, v{vLR}
    v_mov_b32 v{vT2}, {WS_SIZE}
    v_cmp_eq_u32 vcc, s{sX}, v{vG}
    s_lshl_b32 s{sT1}, s{sX}, 8
    s_add_u32 s{sT0}, s{sT0}, s{sT1}
    v_cndmask_b32 v{vB1R}, v{vB1R}, v{vT2}, vcc
    v_and_b32 v{vT2}, 1, v{vG}
    v_lshlrev_b32 v{vLW}, 11, v{vT2}
    v_lshl_add_u32 v{vLW}, v{vI}, 4, v{vLW}
    v_lshrrev_b32 v{vT2}, 1, v{vG}
    v_lshl_add_u32 v{vLW}, v{vT2}, 3, v{vLW}
    s_lshl_b32 s{sT1}, s{sT2}, 10
    s_add_u32 s{sT0}, s{sT0}, s{sT1}
    v_add_u32 v{vB1W}, s{sT0}, v{vLW}
    s_lshl_b32 s{sT1}, s{sT2}, 8
    v_add_u32 v{vLW}, s{sT1}, v{vLW}""")
    for r in range(4): a(f'v_mov_b32 v{RDD+r}, 0')
    a(f'ds_write_b128 v{vLR}, {v(RDD,4)} offset:{LDS_W}\ns_waitcnt lgkmcnt(0)')
    a(f"""s_lshl_b32 s{sT0}, s{sT2}, 6
    s_add_u32 s{sT0}, s{sT0}, s{sO1}
    s_add_u32 s{sT0}, s{sT0}, {B2_OFF}
    v_lshl_add_u32 v{vB2W}, v{vG}, 4, s{sT0}
    v_lshrrev_b32 v{vT2}, 2, v{vI}
    v_lshl_add_u32 v{vB2W}, v{vT2}, 7, v{vB2W}
    v_and_b32 v{vT2}, 3, v{vI}
    v_lshl_add_u32 v{vB2W}, v{vT2}, 2, v{vB2W}""")
    a(f's_cmp_eq_u32 s{sPW}, 3\ns_cbranch_scc0 RQ_N3')
    for rg in range(2):
        for t in range(2):
            a(f"""v_subrev_u32 v{vT2}, {8+4*rg}, v{vI}
            v_lshlrev_b32 v{vT2}, 1, v{vT2}
            v_add_u32 v{vT2}, {t}, v{vT2}""")
            make_sel(a, SV + (rg*2+t)*4, vT2, vCH, RDD)
    a(f'RQ_N3:\ns_cmp_eq_u32 s{sPW}, 0\ns_cbranch_scc0 RQ_N0')
    a(f'v_mov_b32 v{vT2}, 0xff800000\nv_cmp_gt_u32 vcc, 32, v0\ns_nop 1')
    for r in range(4): a(f'v_cndmask_b32 v{CM+r}, 0, v{vT2}, vcc')
    for r in range(4): a(f'v_mov_b32 v{ONES+r}, 0x3f803f80')
    a('RQ_N0:')
    get_pages('RQ_PG', AM)
    vS2 = 96
    a(f'v_mov_b32 v{vS2}, -1\nv_mov_b32 v{vS2+1}, -1')
    a(f's_add_u32 s{sT0}, s{sPW}, 1\ns_bitcmp1_b32 s{sT0}, 1\ns_cbranch_scc0 RQ_NW2')
    FRESH = opt.get('fresh', True)
    for sl in range(NSTEP-1 if FRESH else 4):
        if FRESH: a(f's_xor_b32 s{sT0}, s{sP0}, {((sl >> 3) & 1) << 13}\ns_add_u32 s{sT0}, s{sT0}, {B1F_BASE + (sl << SH_B1)}')
        else: a(f's_add_u32 s{sT0}, s{sP0}, {sl << SH_B1}')
        a(f'buffer_store_dwordx2 {v(vS2,2)}, v{vB1W}, {W}, s{sT0} offen sc1')
        if sl % 16 == 15: a('s_waitcnt vmcnt(40)')
    a('s_waitcnt vmcnt(0)')
    perm_w(wo, 8)
    a('RQ_NW2:')
    sK0, sK1, sV0, sJJ = 52, 53, 54, 55
    KVF = opt.get('kvflav', '')
    a(f"""s_and_b32 s{sJJ}, s{sRHO}, 3
    s_mov_b32 s{sK0}, {KV_BASE}
    s_mov_b32 s{sK1}, {KV_BASE + 4096}
    s_lshl_b32 s{sV0}, s{sJJ}, 11
    s_add_u32 s{sV0}, s{sV0}, {KV_BASE + 8192}
    s_mov_b32 s{sKVM}, {KVM_BASE}
    s_lshl_b32 s{sKV}, s{sJJ}, 9
    s_add_u32 s{sKV}, s{sKV}, {KVM_BASE + 4096 - 512}""")
    def prefetch():
        for i in range(8): a(f'buffer_load_dwordx4 {v(KX+4*i,4)}, v{vKV}, {W}, s{sK0+(i>>2)} offen offset:{(i&3)*1024}{KVF}')
        for i in range(2): a(f'buffer_load_dwordx4 {v(VX+4*i,4)}, v{vKV}, {W}, s{sV0} offen offset:{i*1024}{KVF}')
        for q in range(3): a(f's_add_u32 s{sK0+q}, s{sK0+q}, {32*16384}')
    a('s_barrier')
    a(f's_cmp_lg_u32 s{sPW}, 0\ns_cbranch_scc1 RQ_I1')
    if MEGA:
        a(f's_mov_b32 s{sT1}, 0'); kv_wait('RQ_KV0', vT)
    prefetch()
    a('RQ_I1:\ns_barrier')
    getmode(vT)
    sAC, sOC, sB1C, sB1A, sB2N = sO1, sO2, sO3, sO4, sO5
    def q_loop(Z, IN):
        def kvm_signal(lbl, final):
            if not MEGA: return
            if not final:
                a(f's_cmp_eq_u32 s{sSTEP}, 0\ns_cbranch_scc1 {lbl}\ns_and_b32 s{sT0}, s{sSTEP}, 31\ns_cmp_lg_u32 s{sT0}, s{sC}\ns_cbranch_scc1 {lbl}')
            a(f's_lshl_b32 s{sT0}, s{sX}, 6\ns_add_u32 s{sT0}, s{sT0}, s{sSTEP}\ns_lshl_b32 s{sT0}, s{sT0}, 7\ns_add_u32 s{sT0}, s{sT0}, {CNT_BASE + (C_KVM-1)*128}')
            a(f'v_mov_b32 v{vM2}, {1 if final else 32}\ns_mov_b64 exec, 1')
            if final:
                for i in (1, 0): a(f'buffer_atomic_add v{vM2}, off, {W}, s{sT0} offset:{128*i} sc1')
            else: a(f'buffer_store_dword v{vM2}, off, {W}, s{sT0} sc1')
            a(f's_mov_b64 exec, -1\n{lbl}:')
        a(f'RQ{Z}_LOOP:')
        slot(a, sAC, 0, SH_A, sP1); slot(a, sOC, 0, SH_B2, sP0); slot(a, sB1A, 2, SH_B1, sP0); slot(a, sB2N, 1, SH_B2, sP0)
        if FRESH: a(f's_lshl_b32 s{sB1C}, s{sSTEP}, {SH_B1}\ns_add_u32 s{sB1C}, s{sB1C}, {B1F_BASE}\n' + kvm_half(sB1C) + f's_mov_b32 s{sB1C}, s{sT0}')
        else: slot(a, sB1C, 0, SH_B1, sP0)
        a(f's_add_u32 s{sO6}, s{sOC}, 4096')
        a(f's_cmp_eq_u32 s{sPW}, 3\ns_cbranch_scc1 RQ{Z}_VR')
        a(f's_cmp_ge_u32 s{sSTEP}, {NSTEP-1}\ns_cbranch_scc1 RQ_LAST')
        a(f's_cmp_eq_u32 s{sPW}, 0\ns_cbranch_scc1 RQ{Z}_AT')
        a('s_barrier\ns_barrier\ns_barrier')
        if opt.get('arm_at', 0) == 2 and not FRESH: a(f'buffer_store_dwordx2 {v(vS2,2)}, v{vB1W}, {W}, s{sB1A} offen sc1')
        a(f's_branch RQ{Z}_OG')
        a(f'RQ{Z}_VR:\ns_waitcnt vmcnt(0)\ns_barrier\ns_barrier')
        for q in range(4): a(f'ds_read_b128 {v(VR+4*q,4)}, v{vLR} offset:{LDS_P + 8192 - 2048 + q*1024}')
        for q in range(4):
            a(f's_waitcnt lgkmcnt({3-q})')
            for t in range(2):
                d = v(VD+4*t,4)
                a(f'v_mfma_f32_16x16x32_bf16 {d}, {v(SV+((q>>1)*2+t)*4,4)}, {v(VR+4*q,4)}, {"0" if q == 0 else d}')
        a('s_nop 7')
        for i in range(4): a(f'v_cvt_pk_bf16_f32 v{VM+i}, v{VD+2*i}, v{VD+2*i+1}')
        VCP = kvm_half(sKV) + f's_mov_b32 exec_lo, 0\nbuffer_store_dwordx4 {v(VM,4)}, v{vKV}, {W}, s{sT0} offen sc1\ns_mov_b32 exec_lo, -1\ns_add_u32 s{sKV}, s{sKV}, {32*UNIT}'
        a(f's_cmp_ge_u32 s{sSTEP}, {NSTEP-1}\ns_cbranch_scc1 RQ{Z}_FINAL')
        a(f'ds_write_b128 v{vLR}, {v(VM,4)} offset:{LDS_V - 2048}\ns_waitcnt lgkmcnt(0)\ns_barrier')
        J2 = opt.get('junk', 1) == 2
        if J2: a('s_barrier\ns_barrier')
        if not opt.get('nocopy'): a(VCP)
        if not J2: a('s_barrier\ns_barrier')
        kvm_signal(f'RQ{Z}_SG', False)
        a(f's_branch RQ{Z}_E')
        a(f'RQ{Z}_AT:\ns_barrier')
        ts(0)
        nops('a_nops', 48)
        ldt = lambda k: a(f'buffer_load_dwordx4 {v(T+4*k,4)}, v{vTR}, {W}, s{sAC} offen offset:{k*1024} sc1')
        TD = opt.get('tdepth', 4)
        for i in range(TD - 1):
            for k in range(4): ldt(k)
            if i == opt.get('t1b', 1): a('s_barrier')
            else: nops('tgap', 12)
        a(f'RQ{Z}_TF:')
        for k in range(4): ldt(k)
        budget(a, EXIT); cnt(0)
        a(f's_waitcnt vmcnt({4*(TD-1)})')
        ts(1)
        a(f'v_max3_u32 v{vM}, v{T+3}, v{T+7}, v{T+11}\nv_max3_u32 v{vCH}, v{T}, v{T+1}, v{T+2}\nv_max_u32 v{vM}, v{vM}, v{T+15}')
        def smf(k, t):
            tk = v(T+4*k,4)
            if t == 0: a(f'v_mfma_f32_16x16x32_bf16 {v(S,4)}, {tk}, {tk}, {v(CM,4) if k == 0 else v(S,4)}')
            else:
                d = v(S+4*t,4)
                a(f'v_mfma_f32_16x16x32_bf16 {d}, {v(KX+((t-1)*4+k)*4,4)}, {tk}, {"0" if k == 0 else d}')
        smf(0,0)
        a(f'v_cmp_eq_u32 vcc, -1, v{vM}\nv_max3_u32 v{vT}, v{T+4}, v{T+5}, v{T+6}')
        smf(0,1)
        a(f'v_max3_u32 v{vCH}, v{vCH}, v{T+8}, v{T+9}\nv_max3_u32 v{vT}, v{vT}, v{T+10}, v{T+12}')
        smf(0,2)
        a(f's_cbranch_vccnz RQ{Z}_TF')
        smf(1,0)
        a(f'v_max3_u32 v{vCH}, v{vCH}, v{T+13}, v{T+14}\nv_max_u32 v{vCH}, v{vCH}, v{vT}')
        smf(1,1)
        a(f'v_cmp_eq_u32 vcc, -1, v{vCH}')
        smf(1,2); smf(2,0)
        a(f's_cbranch_vccnz RQ{Z}_TF')
        smf(2,1)
        a('s_barrier')
        smf(2,2)
        a(f'ds_read_b128 {v(VM,4)}, v{vLR} offset:{LDS_V}')
        smf(3,0); smf(3,1); smf(3,2)
        a('s_nop 1')
        ts(2)
        a(f'v_max3_f32 v{vM}, v{S}, v{S+1}, v{S+2}')
        a('s_nop 1')
        a(f'v_max3_f32 v{vM2}, v{S+3}, v{S+4}, v{S+5}')
        a(f'v_max3_f32 v{vM}, v{vM}, v{S+6}, v{S+7}')
        a('s_nop 0')
        a(f'v_max3_f32 v{vM2}, v{vM2}, v{S+8}, v{S+9}')
        a(f'v_max3_f32 v{vM}, v{vM}, v{S+10}, v{S+11}')
        a(f'v_max_f32 v{vT}, v{vM}, v{vM2}')
        a(f'v_max_f32 v{vM}, v{vM}, v{vM2}')
        a(f"""s_nop 1
        v_permlane32_swap_b32 v{vM}, v{vT}
        v_max_f32 v{vM2}, v{vM}, v{vT}
        v_max_f32 v{vM}, v{vM}, v{vT}
        s_waitcnt lgkmcnt(0)
        s_nop 0
        v_permlane16_swap_b32 v{vM}, v{vM2}
        v_max_f32 v{vM}, v{vM}, v{vM2}
        v_mul_f32 v{vM2}, s{sSC+1}, v{vM}""")
        ts(4)
        for r in range(0, 12, 2): a(f'v_pk_fma_f32 {v(S+r,2)}, {v(S+r,2)}, s[{sSC}:{sSC+1}], {v(vM2,2)} op_sel_hi:[1,0,0]')
        ex = lambda r: a(f'v_exp_f32 v{S+r}, v{S+r}')
        for r in range(6): ex(r)
        a(f'v_cvt_pk_bf16_f32 v{PM}, v{S}, v{S+1}\nv_cvt_pk_bf16_f32 v{PM+1}, v{S+2}, v{S+3}')
        ex(6); ex(7)
        a(f'v_mfma_f32_16x16x16_bf16 {v(LD,4)}, {v(ONES,2)}, {v(PM,2)}, 0')
        ex(8)
        a(f'v_mfma_f32_16x16x16_bf16 {v(OD,4)}, {v(VM,2)}, {v(PM,2)}, 0')
        ex(9)
        a(f'v_mfma_f32_16x16x16_bf16 {v(OD+4,4)}, {v(VM+2,2)}, {v(PM,2)}, 0')
        ex(10); ex(11)
        for r in range(4): a(f'v_cvt_pk_bf16_f32 v{PX+r}, v{S+4+2*r}, v{S+5+2*r}')
        ts(5)
        a('s_nop 1')
        a(f'v_mfma_f32_16x16x32_bf16 {v(LD,4)}, {v(ONES,4)}, {v(PX,4)}, {v(LD,4)}')
        a(f'v_mfma_f32_16x16x32_bf16 {v(OD,4)}, {v(VX,4)}, {v(PX,4)}, {v(OD,4)}')
        a(f'v_mfma_f32_16x16x32_bf16 {v(OD+4,4)}, {v(VX+4,4)}, {v(PX,4)}, {v(OD+4,4)}')
        a(f's_mov_b32 exec_lo, 0x00ff00ff\ns_mov_b32 exec_hi, 0x00ff00ff')
        a(f'v_rcp_f32 v{LD}, v{LD}\ns_nop 1')
        sc = lambda r: a(f'v_pk_mul_f32 {v(OD+r,2)}, {v(OD+r,2)}, {v(LD,2)} op_sel_hi:[1,0]')
        sc(0); sc(2); a('s_nop 0'); sc(4); sc(6)
        for r in range(4): a(f'v_cvt_pk_bf16_f32 v{OP+r}, v{OD+r}, v{OD+4+r}')
        for r in range(4): a(f'v_min_u32 v{OP+r}, -2, v{OP+r}')
        a(f'buffer_store_dwordx4 {v(OP,4)}, v{vOW}, {W}, s{sOC} offen{IN}\ns_mov_b64 exec, -1')
        ts(6)
        a('s_barrier\ns_barrier')
        sleep('wc_delay', 0)
        if not opt.get('nopf'): prefetch()
        a(f's_branch RQ{Z}_E')
        a(f'RQ{Z}_OG:\ns_barrier')
        ts(7)
        nops('o_nops', 16)
        a(f'RQ{Z}_RETRY:')
        def ldg(k):
            for j in (2*k, 2*k+1): a(f'buffer_load_dwordx4 {v(OG+4*j,4)}, v{vGR}, {W}, s{sOC if j < 4 else sO6} offen offset:{(j&3)*1024} sc1')
        for k in range(4):
            ldg(k)
            if k == 0:
                for r in range(8): a(f'v_mov_b32 v{ACC+r}, 0')
                nops(opt.get('ogap', 12) - 8)
            elif k < 3: nops('ogap', 12)
        sms = lambda t, j: f'v_smfmac_f32_16x16x64_bf16 {v(ACC+4*t,4)}, {v(OG+4*j,4)}, {v(wo(t,j),8)}, v{vIDX}'
        def o_fail(i): cnt(5+i); budget(a, EXIT)
        o_rest = gather_fsm(a, f'ROG{Z}', 4, ldg, lambda k: OG+8*k, lambda k, f: [sms(0,2*k), sms(0,2*k+1), sms(1,2*k), sms(1,2*k+1)],
                            vCH, vT, f'ROG{Z}_DONE', o_fail, first_ts=lambda: ts(8), last_ts=lambda: ts(9), mult=2, vQ=vM)
        a(f'ROG{Z}_DONE:\nv_max_u32 v{vCH}, v{vCH}, v{vT}\nv_cmp_eq_u32 vcc, -1, v{vCH}')
        def hadd(t):
            b = ACC + 4*t
            a(f'v_permlane32_swap_b32 v{b}, v{b+2}\nv_permlane32_swap_b32 v{b+1}, v{b+3}\nv_pk_add_f32 {v(b,2)}, {v(b,2)}, {v(b+2,2)}')
        hadd(0)
        a(f's_cbranch_vccnz RQ{Z}_RO\ns_nop 1')
        hadd(1)
        for r in range(2): a(f'v_cvt_pk_bf16_f32 v{ACC+2+r}, v{ACC+r}, v{ACC+4+r}')
        for r in range(2): a(f'v_min_u32 v{ACC+2+r}, -2, v{ACC+2+r}')
        a(f'buffer_store_dwordx2 {v(ACC+2,2)}, v{vB1W}, {W}, s{sB1C} offen sc1')
        ts(11)
        ARM = f'buffer_store_dwordx2 {v(vS2,2)}, v{vB1W}, {W}, s{sB1A} offen sc1'
        a(f'ds_write_b64 v{vLW}, {v(ACC+2,2)} offset:{LDS_W}')
        if opt.get('arm_at', 0) == 0 and not FRESH: a(ARM)
        a('s_waitcnt lgkmcnt(0)\ns_barrier')
        a(f'ds_read_b128 {v(BD,4)}, v{vLR} offset:{LDS_W}\ns_waitcnt lgkmcnt(0)')
        a(f'v_mfma_f32_16x16x32_bf16 {v(RDD,4)}, {v(SEL,4)}, {v(BD,4)}, 0')
        sleep('b1_delay', 3)
        nops('b1_nops')
        def ldb():
            for j in range(2): a(f'buffer_load_dwordx4 {v(BD+4*j,4)}, v{vB1R}, {W}, s{sB1C} offen offset:{j*1024} sc1')
        BDp = opt.get('bdepth', 6)
        ts(12)
        for i in range(BDp - 1):
            ldb(); nops('bgap', 14)
        a(f'RQ{Z}_B1F:')
        ldb(); budget(a, EXIT); cnt(10)
        a(f's_waitcnt vmcnt({2*(BDp-1)})')
        ts(13)
        a(f'v_max3_u32 v{vCH}, v{BD}, v{BD+1}, v{BD+2}\nv_max3_u32 v{vCH}, v{vCH}, v{BD+3}, v{BD+4}')
        a(f'v_mfma_f32_16x16x32_bf16 {v(BO,4)}, {v(SEL,4)}, {v(BD,4)}, {v(RDD,4)}')
        a(f'v_max3_u32 v{vT}, v{BD+5}, v{BD+6}, v{BD+7}')
        a(f'v_mfma_f32_16x16x32_bf16 {v(BO,4)}, {v(SEL,4)}, {v(BD+4,4)}, {v(BO,4)}')
        a(f'v_max_u32 v{vCH}, v{vCH}, v{vT}\nv_cmp_eq_u32 vcc, -1, v{vCH}\ns_nop 4\ns_cbranch_vccnz RQ{Z}_B1F')
        a(f'v_cvt_pk_bf16_f32 v{vT}, v{BO}, v{BO+1}\nv_min_u32 v{vT}, -2, v{vT}')
        a(f'buffer_store_dword v{vT}, v{vB2W}, {W}, s{sB2N} offen{IN}')
        ts(14)
        a(f'RQ{Z}_E:\ns_add_u32 s{sSTEP}, s{sSTEP}, 1')
        a('s_barrier')
        tl_dump(f'RQ{Z}_TL', vT)
        a(f's_branch RQ{Z}_LOOP')
        a(f'RQ{Z}_RO:'); budget(a, EXIT)
        a(f's_waitcnt vmcnt(0)\ns_nop 4\ns_branch RQ{Z}_RETRY')
        o_rest()
        a(f'RQ{Z}_FINAL:')
        a(VCP)
        a('s_waitcnt vmcnt(0)\ns_barrier')
        kvm_signal(f'RQ{Z}_SGF', True)
        a('s_waitcnt vmcnt(0)\ns_branch RQ_END')
    if DUAL:
        a(f's_cmp_lg_u32 s{sMODE}, 0\ns_cbranch_scc1 RQs_LOOP')
        q_loop('f', ''); q_loop('s', ' sc1')
    else: q_loop('', LIN)
    a('RQ_LAST:\ns_barrier\ns_barrier\ns_barrier')
    a('RQ_END:')
    if TL: dump(2*NST, 12, 1, 16, vT)
    a(f's_branch {NEXT}')
```

```python
from asmlib import *
from layout import *
from gemm import G
from rec import *

POL_BASE = G_BASE + 32768

def common_entry(a, nwg, exit_lbl, split=True):
    a(f'''s_cmp_ge_u32 s2, {nwg}
    s_cbranch_scc1 {exit_lbl}
    s_load_dwordx4 s[4:7], s[0:1], 96
    s_waitcnt lgkmcnt(0)''')
    srd(a, DBG, 4, 256); srd(a, WS, 6, WS_SIZE)
    a(f's_mov_b32 s{sWSB}, s6\ns_mov_b32 s{sWSB+1}, s7')
    if split:
        a(f'v_lshrrev_b32 v1, 6, v0\nv_and_b32 v0, 63, v0\ns_nop 0\nv_readfirstlane_b32 s{G.sWv}, v1\ns_nop 3')

def ticket(a, exit_lbl):
    D = f's[{DBG}:{DBG+3}]'
    a(f'''s_getreg_b32 s3, hwreg(HW_REG_XCC_ID)
    s_and_b32 s3, s3, 7
    s_mov_b32 s{sBUD}, 4000000
    v_cmp_eq_u32 vcc, 0, v0
    s_and_saveexec_b64 s[4:5], vcc
    s_cbranch_execz TK_W
    v_mov_b32 v1, 1
    v_mov_b32 v2, 1
    s_and_b32 s{sT0}, s3, 3
    s_lshl_b32 s{sT0}, s{sT0}, 2
    s_and_b32 s{sT1}, s3, 4
    s_lshl_b32 s{sT1}, s{sT1}, 5
    s_add_u32 s{sT0}, s{sT0}, s{sT1}
    buffer_atomic_add v1, off, {D}, s{sT0} sc0 sc1
    s_waitcnt vmcnt(0)
    v_readfirstlane_b32 s{sT1}, v1
    s_lshl_b32 s{sT0}, s3, 5
    s_nop 2
    s_add_u32 s{sRHO}, s{sT0}, s{sT1}
    s_cmp_lt_u32 s{sT1}, 32
    s_cbranch_scc1 TK_HAVE
    buffer_atomic_add v2, off, {D}, 0 offset:68 sc1
    v_mov_b32 v1, 1
    buffer_atomic_add v1, off, {D}, 0 offset:36 sc0 sc1
TK_ALL:
    buffer_load_dwordx4 v[4:7], off, {D}, 0 sc1
    buffer_load_dwordx4 v[8:11], off, {D}, 0 offset:128 sc1
    s_sub_u32 s{sBUD}, s{sBUD}, 1
    s_cbranch_scc1 {exit_lbl}
    s_waitcnt vmcnt(0)
    v_add3_u32 v3, v4, v5, v6
    v_add3_u32 v3, v3, v7, v8
    v_add3_u32 v3, v3, v9, v10
    v_add_u32 v3, v3, v11
    v_cmp_gt_u32 vcc, 0x100, v3
    s_cbranch_vccnz TK_ALL
    v_readfirstlane_b32 s{sT1}, v1''')
    for x in range(8):
        a(f'''v_readfirstlane_b32 s{sT0}, v{4+x}
        s_nop 3
        s_min_u32 s{sT0}, s{sT0}, 32
        s_add_u32 s{sRHO}, s{sT0}, s{sT1}
        s_sub_u32 s{sT1}, s{sRHO}, 32
        s_add_u32 s{sRHO}, s{sRHO}, {32*x}
        s_cmp_lt_i32 s{sT1}, 0
        s_cbranch_scc1 TK_HAVE''')
    a(f'''TK_HAVE:
    v_mov_b32 v1, s{sRHO}
    v_mov_b32 v2, 0
    s_waitcnt vmcnt(0)
    ds_write_b32 v2, v1
TK_W:
    s_mov_b64 exec, s[4:5]
    s_waitcnt lgkmcnt(0)
    s_barrier
    v_mov_b32 v2, 0
    ds_read_b32 v1, v2
    s_waitcnt lgkmcnt(0)
    v_readfirstlane_b32 s{sRHO}, v1
    s_barrier
    s_and_b32 s{sRHO}, s{sRHO}, 255''')

def probe(a, tag):
    Wd = f's[{WS}:{WS+3}]'
    a(f's_getreg_b32 s3, hwreg(HW_REG_XCC_ID)\ns_and_b32 s3, s3, 4\nv_mov_b32 v1, 0')
    for pg, base in enumerate((MSG0, MSG1)):
        a('s_mov_b32 s90, -1\ns_mov_b32 s91, -1')
        for rep in range(3):
            for h in range(2):
                a(f'''s_mov_b32 s89, {base + h*8192 + rep*512}
                s_memtime s[92:93]
                s_waitcnt lgkmcnt(0)
                buffer_store_dword v1, off, {Wd}, s89 sc1
                s_waitcnt vmcnt(0)
                buffer_load_dword v2, off, {Wd}, s89 sc1
                s_waitcnt vmcnt(0)
                s_memtime s[94:95]
                s_waitcnt lgkmcnt(0)
                s_sub_u32 s92, s94, s92
                s_min_u32 s{90+h}, s{90+h}, s92''')
        a(f'''s_cmp_lt_u32 s91, s90
        s_cselect_b32 s89, 4, 0
        s_xor_b32 s89, s89, s3
        s_lshl_b32 s89, s89, 11
        s_add_u32 s89, s89, {base}
        v_mov_b32 v{4+pg}, s89''')
```

```python
import sys, json
from asmlib import *
from layout import *
from gemm import *
from gemm1 import *
from misc import *
from roles import *
import rec
NAME = 'gated_mix__memory_aug_recurrent_mem_tr__spectral_gfnet__prompt'
HEAD = open(f'cdna_kernels/{NAME}.s.ref').read().split('; Override launch')[0]

T_G1W, T_G1N, T_PREP, T_WT, T_FFT, T_AT, T_G2, T_RED = range(8)
sGRP, sIDX, sRDY = 52, 53, 54
sE = 20
sTB = 28
sGB = 30
vNX = 111
LDS_BC = 131072

def dep(idx, target, gs=0): return idx | (gs << 10) | (target << 20)

DEFAULT_ORDER = ('n0 n1 prep k2 k3 q0 q1 F wt a0 a1 k4 k5 q2 q3 fft g0 g1 a2 k6 k7 q4 q5 z0 z1 z2 z3 a3 g2 g3 q6 q7 r0 r1 a4 z4 z5 z6 z7 g4 a5 g5 r2 r3 a6 g6 r4 r5 a7 r6 g7 r7')
def task_list(opt):
    L = []
    def add(ty, p1=0, p2=0, p3=0, deps=(), sig=0, w6=0, w7=0):
        d = list(deps) + [0] * (4 - len(deps))
        L.append([ty | p1 << 8 | p2 << 16 | p3 << 24] + d + [sig, w6, w7])
    def kv_wide(rb):
        for ty in (0, 1):
            for c in range(4): add(T_G1W, rb, c, ty, sig=dep(C_KV + rb, 2, 8))
    def q_wide(rb):
        for c in range(4): add(T_G1W, rb, c, 2, sig=dep(C_Q + rb, 1, 8))
    def attn(rb):
        for sg in range(8*rb, 8*rb+8):
            add(T_AT, sg, deps=[dep(C_KVM + sg, 32, 64), dep(C_Q + rb, 4, 8), dep(C_KV + rb, 16, 8), dep(C_PREP, 128)], sig=dep(C_AT + rb, 1))
    splits = opt.get('splits', [2, 2, 2, 2, 2, 4, 8, 16])
    slot = {}
    n = 0
    for rb in range(8):
        if splits[rb] > 1:
            for c in range(2): slot[rb, c] = n; n += splits[rb] + 1
    assert n <= 128
    zdeps = [dep(C_FFT, 64), dep(C_PREP, 128)]
    def zpart(rb):
        for c in range(2): add(T_G2, rb, c | 1 << 1, 0, deps=zdeps, sig=dep(C_G2 + rb, 1, 8), w6=0, w7=slot[rb, c])
    def g2(rb):
        sp = splits[rb]
        if sp == 1:
            for c in range(2): add(T_G2, rb, c | 3 << 1, 0, deps=zdeps + [dep(C_AT + rb, 32)], w6=64)
            return
        ns = 64 // sp
        for p in range(sp):
            for c in range(2): add(T_G2, rb, c, p*ns, deps=[dep(C_AT + rb, 32)], sig=dep(C_G2 + rb, 1, 8), w6=ns, w7=slot[rb, c] + 1 + p)
    def red(rb):
        sp = splits[rb]
        if sp == 1: return
        nt = 8 if sp >= 8 else (4 if sp >= 4 else 2)
        for c in range(2):
            for t in range(nt): add(T_RED, rb, c | (sp + 1) << 1, t * (64 // nt), deps=[dep(C_G2 + rb, 2*(sp+1), 8)], w6=8 // nt, w7=slot[rb, c])
    def kv_narrow(rb):
        for ty in (0, 1):
            for c in range(8): add(T_G1N, rb, c, ty, sig=dep(C_KV + rb, 1, 8))
    def prep():
        for i in range(32): add(T_PREP, i, sig=dep(C_PREP, 1))
    def ftiles():
        for rb in range(8): add(T_G1W, rb, 0, 3, deps=[dep(C_PREP, 128)], sig=dep(C_F, 1))
    def wt():
        for i in range(16): add(T_WT, i, sig=dep(C_WT, 1))
    def fft():
        for i in range(16): add(T_FFT, i, deps=[dep(C_F, 32), dep(C_WT, 64)], sig=dep(C_FFT, 1))
    fn = dict(n=kv_narrow, k=kv_wide, q=q_wide, a=attn, g=g2, r=red, z=lambda rb: zpart(rb) if splits[rb] > 1 else None)
    for tok in opt.get('order', DEFAULT_ORDER).split():
        if tok in ('prep', 'F', 'wt', 'fft'): dict(prep=prep, F=ftiles, wt=wt, fft=fft)[tok]()
        else: fn[tok[0]](int(tok[1]))
    return L

def build(opt, path):
    a = Asm()
    D = f's[{DBG}:{DBG+3}]'
    L = task_list(opt)
    GT = opt.get('gtrace', False)
    common_entry(a, 256, 'K_EXIT', split=False)
    ticket(a, 'K_EXIT')
    a(f's_cmp_lt_u32 s{sRHO}, 128\ns_cbranch_scc0 G_ENTRY')
    o = dict(opt); o['exit'] = 'K_EXIT'; o['mega'] = True; o['kvflav'] = ' sc1'; o['next'] = 'R_JOIN' if opt.get('join', True) else 'K_EXIT'
    rec.gen_rec(a, o)
    a('K_EXIT:\ns_endpgm')
    a(f'''R_JOIN:
    s_lshl_b32 s4, s{sW}, 6
    v_add_u32 v0, s4, v0
G_ENTRY:
    v_lshrrev_b32 v1, 6, v0
    v_and_b32 v0, 63, v0
    s_bfe_u32 s{sGRP}, s{sRHO}, 0x20005
    v_readfirstlane_b32 s{G.sWv}, v1
    s_and_b32 s{sIDX}, s{sRHO}, 31
    s_mov_b32 s{sRDY}, 0
    s_mov_b32 s{sGB}, 3000000
    s_mov_b32 s55, s{sRHO}
    s_getpc_b64 s[{sTB}:{sTB+1}]
G_PC:
    s_add_u32 s{sTB}, s{sTB}, G_TABLE-G_PC
    s_addc_u32 s{sTB+1}, s{sTB+1}, 0
    s_cmp_lt_u32 s55, 128
    s_cbranch_scc0 G_E2
    s_mov_b32 s{sE+5}, 0
    s_mov_b32 s{sIDX}, 1023
    s_branch G_DONE
G_E2:
    s_cmp_lg_u32 s55, 255
    s_cbranch_scc1 G_LOOP''')
    a(f's_cmp_lg_u32 s{G.sWv}, 0\ns_cbranch_scc1 G_Z')
    probe(a, 'PB')
    a('G_Z:\ns_barrier')
    a(f'v_lshlrev_b32 v1, 4, v0\ns_mul_i32 s89, s{G.sWv}, 6144\ns_add_u32 s89, s89, {CNT_BASE}\ns_add_u32 s90, s89, 4096')
    for r in range(4): a(f'v_mov_b32 v{8+r}, 0')
    for i in range(6): a(f'buffer_store_dwordx4 v[8:11], v1, {W}, s{89+(i>>2)} offen offset:{(i&3)*1024} sc1')
    assert C_END * 128 <= 8 * 6144
    a(f'''s_waitcnt vmcnt(0)
    s_barrier
    s_cmp_lg_u32 s{G.sWv}, 0
    s_cbranch_scc1 G_LOOP
    v_add_u32 v4, 1, v4
    v_add_u32 v5, 1, v5
    s_mov_b64 exec, 1
    buffer_store_dwordx2 v[4:5], off, {D}, 0 offset:72 sc1
    s_mov_b64 exec, -1''')
    a(f'''G_LOOP:
    s_cmp_ge_u32 s{sIDX}, {len(L)}
    s_cbranch_scc1 G_EXIT
    s_lshl_b32 s4, s{sIDX}, 5
    s_load_dwordx8 s[{sE}:{sE+7}], s[{sTB}:{sTB+1}], s4''')
    if GT: a('s_memrealtime s[96:97]')
    a(f'''s_cmp_lg_u32 s{G.sWv}, 0
    s_cbranch_scc1 G_GO
    s_waitcnt lgkmcnt(0)
    s_cmp_eq_u32 s{sE+1}, 0
    s_cbranch_scc1 G_GO
    v_mov_b32 v1, 0''')
    for i in range(4): a(f'v_writelane_b32 v1, s{sE+1+i}, {i}')
    a(f'''v_bfe_u32 v2, v1, 10, 7
    v_and_b32 v3, 0x3ff, v1
    v_mad_u32_u24 v2, v2, s{sGRP}, v3
    v_lshlrev_b32 v2, 7, v2
    v_lshrrev_b32 v1, 20, v1
    s_mov_b32 s4, {CNT_BASE}
    s_mov_b64 exec, 15
G_POLL:
    buffer_load_dword v3, v2, {W}, s4 offen sc1
    s_sub_u32 s{sGB}, s{sGB}, 1
    s_cbranch_scc1 G_EXIT
    s_waitcnt vmcnt(0)
    v_cmp_lt_u32 vcc, v3, v1
    s_cbranch_vccz G_POLLED
    s_sleep {opt.get('gsleep', 4)}
    s_branch G_POLL
G_POLLED:
    s_mov_b64 exec, -1
G_GO:
    s_waitcnt lgkmcnt(0)
    s_barrier''')
    if GT: a('s_memrealtime s[98:99]')
    a(f'''s_and_b32 s4, s{sE}, 255
    s_bfe_u32 s{sRB}, s{sE}, 0x80008
    s_bfe_u32 s{sCB}, s{sE}, 0x80010
    s_lshr_b32 s{sTY}, s{sE}, 24''')
    names = ['G1W', 'G1N', 'PREP', 'WT', 'FFT', 'AT', 'G2', 'RED']
    for i, n in enumerate(names): a(f's_cmp_eq_u32 s4, {i}\ns_cbranch_scc1 H_{n}')
    a(f'''G_DONE:
    s_cmp_lg_u32 s{G.sWv}, 0
    s_cbranch_scc1 G_D1
    v_mov_b32 v{vNX}, 1
    s_lshl_b32 s4, s{sGRP}, 2
    s_mov_b64 exec, 1
    buffer_atomic_add v{vNX}, off, {D}, s4 offset:160 sc0 sc1
    s_mov_b64 exec, -1
G_D1:
    s_waitcnt vmcnt(0) lgkmcnt(0)
    s_barrier
    s_cmp_lg_u32 s{G.sWv}, 0
    s_cbranch_scc1 G_NEXT
    s_cmp_lg_u32 s{sRDY}, 0
    s_cbranch_scc1 G_RDY
G_RW:
    buffer_load_dword v1, off, {D}, 0 offset:72 sc1
    s_sub_u32 s{sGB}, s{sGB}, 1
    s_cbranch_scc1 G_EXIT
    s_waitcnt vmcnt(0)
    v_cmp_eq_u32 vcc, 0, v1
    s_cbranch_vccnz G_RW
    v_mov_b32 v2, {LDS_BC}
    ds_write_b32 v2, v1 offset:4
    s_mov_b32 s{sRDY}, 1
G_RDY:
    s_mov_b64 exec, 1
    v_mov_b32 v2, {LDS_BC}
    v_add_u32 v{vNX}, 32, v{vNX}
    ds_write_b32 v2, v{vNX}
    s_cmp_eq_u32 s{sE+5}, 0
    s_cbranch_scc1 G_NOSIG
    s_bfe_u32 s4, s{sE+5}, 0x7000a
    s_mul_i32 s4, s4, s{sGRP}
    s_and_b32 s5, s{sE+5}, 0x3ff
    s_add_u32 s4, s4, s5
    s_lshl_b32 s4, s4, 7
    s_add_u32 s4, s4, {CNT_BASE}
    s_lshr_b32 s5, s{sE+5}, 20
    v_mov_b32 v1, s5
    buffer_atomic_add v1, off, {W}, s4 sc1
G_NOSIG:''')
    if GT:
        a(f'''s_memrealtime s[100:101]
        s_lshl_b32 s4, s{sGRP}, 10
        s_add_u32 s4, s4, s{sIDX}
        s_lshl_b32 s4, s4, 4
        s_add_u32 s4, s4, {STAMP_BASE + 768*1024}
        s_waitcnt lgkmcnt(0)
        v_mov_b32 v4, s96
        v_mov_b32 v5, s98
        v_mov_b32 v6, s100
        v_mov_b32 v7, s55
        buffer_store_dwordx4 v[4:7], off, {W}, s4''')
    a(f'''s_mov_b64 exec, -1
    s_waitcnt lgkmcnt(0)
G_NEXT:
    s_barrier
    v_mov_b32 v2, {LDS_BC}
    ds_read_b64 v[2:3], v2
    s_waitcnt lgkmcnt(0)
    v_readfirstlane_b32 s{sIDX}, v2
    v_readfirstlane_b32 s{sP0}, v3
    s_nop 3
    s_branch G_LOOP
G_EXIT:
    s_endpgm''')
    SC = ' sc1'
    a(f'H_G1W:\ns_cmp_eq_u32 s{sTY}, 3\ns_cselect_b32 s4, 0, 2\ns_lshl_b32 s4, s{sGRP}, s4\ns_add_u32 s{sCB}, s{sCB}, s4')
    gen_gemm1(a, 'G1W', 256, 'G_DONE', stflav=SC, ldflav=SC)
    a(f'H_G1N:\ns_lshl_b32 s4, s{sGRP}, 3\ns_add_u32 s{sCB}, s{sCB}, s4')
    gen_gemm1(a, 'G1N', 128, 'G_DONE', stflav=SC, ldflav=SC)
    a(f'H_PREP:\ns_lshl_b32 s{sTK}, s{sGRP}, 5\ns_add_u32 s{sTK}, s{sTK}, s{sRB}\ns_lshl_b32 s{sTK}, s{sTK}, 1\nH_PREP2:')
    gen_prep(a, 'P', stflav=SC)
    a(f's_add_u32 s{sTK}, s{sTK}, 1\ns_bitcmp1_b32 s{sTK}, 0\ns_cbranch_scc1 H_PREP2\ns_branch G_DONE')
    a(f'H_WT:\ns_lshl_b32 s{sTK}, s{sGRP}, 4\ns_add_u32 s{sTK}, s{sTK}, s{sRB}')
    gen_wt(a, 'PW', stflav=SC); a('s_branch G_DONE')
    a(f'H_FFT:\ns_lshl_b32 s{sTK}, s{sGRP}, 4\ns_add_u32 s{sTK}, s{sTK}, s{sRB}')
    gen_fft_tables(a); gen_fft(a, 'FF', ldflav=SC, stflav=SC); a('s_branch G_DONE')
    a('H_AT:')
    gen_attn_setup(a)
    a(f's_lshl_b32 s{sU0}, s{sRB}, 5\ns_lshl_b32 s4, s{sGRP}, 3\ns_add_u32 s{sU0}, s{sU0}, s4\ns_add_u32 s{sU0}, s{sU0}, s{G.sWv}')
    gen_attn(a, ldflav=SC, stflav=SC); a('s_branch G_DONE')
    def g2args():
        a(f'''s_lshr_b32 s{sFL}, s{sCB}, 1
        s_and_b32 s{sCB}, s{sCB}, 1
        s_lshl_b32 s4, s{sGRP}, 1
        s_add_u32 s{sCB}, s{sCB}, s4
        s_mov_b32 s{sK0}, s{sTY}
        s_mov_b32 s{sNO}, s{sE+6}
        s_lshl_b32 s{sSL}, s{sGRP}, 7
        s_add_u32 s{sSL}, s{sSL}, s{sE+7}
        s_lshl_b32 s{sSL}, s{sSL}, 17
        s_add_u32 s{sSL}, s{sSL}, {PART_BASE}''')
    a('H_G2:'); g2args(); gen_gemm2(a, 'G2', 128, 'G_DONE', ldflav=SC)
    a('H_RED:'); g2args(); gen_reduce(a, 'RD', 'G_DONE')
    txt = HEAD + f'; @launch grid=(256,1,1) block=(512,1,1) lds={LDS_BC+128}\n'
    txt += '.amdgcn_target "amdgcn-amd-amdhsa--gfx950"\n.text\n' + kernel_header(NAME + '_kernel') + a.text()
    txt += '.p2align 6\n.type G_TABLE,@object\nG_TABLE:\n' + ''.join('.long ' + ','.join(hex(x) for x in e) + '\n' for e in L)
    txt += '.section .rodata,"a"\n' + kernel_desc(NAME + '_kernel')
    open(path, 'w').write(txt)
    json.dump(L, open('tasks.json', 'w'))

if __name__ == '__main__':
    build(json.loads(sys.argv[1]), sys.argv[2])
```

```python
from asmlib import *

class G:
    TRACE = False
    XS = 60; WSR = 64
    sXo, sWo, sCnt, sM0, sA, sB, sWX, sSl = 68, 69, 70, 71, 72, 73, 74, 75
    sWv = 76
    sRs = 59
    vXD, vWD = 1, 2
    vXR = 4
    vWR = 6
    vT = 14
    FR = 32
    ACC = 128

class Cfg:
    def __init__(s, BM, BN, WM, WN, NS):
        s.BM, s.BN, s.WM, s.WN, s.NS = BM, BN, WM, WN, NS
        s.MT, s.NT = BM // WM // 16, BN // WN // 16
        s.XB = BM * 128; s.SS = s.XB + 128 * BN
        s.NXI, s.NWI = BM // 64, BN // 64
        s.RPI = 512 // BN
        assert s.SS * NS <= 160 * 1024 - 256
    def acc(s, mt, nt): return G.ACC + 4 * (mt * s.NT + nt)

def gemm_setup(a, c, xmode, xstride, wstride):
    g = G; T = g.vT
    lg = {1: 0, 2: 1, 4: 2, 8: 3}[c.WN]
    a(f's_lshr_b32 s{g.sA}, s{g.sWv}, {lg}\ns_and_b32 s{g.sB}, s{g.sWv}, {c.WN-1}')
    if xmode == 'row':
        a(f'''v_lshrrev_b32 v{T}, 3, v0
        s_lshl_b32 s{g.sM0}, s{g.sWv}, 3
        v_add_u32 v{T}, s{g.sM0}, v{T}
        v_lshrrev_b32 v{T+1}, 1, v{T}
        v_xor_b32 v{T+1}, v{T+1}, v0
        v_and_b32 v{T+1}, 7, v{T+1}
        s_mov_b32 s{g.sM0}, {xstride}
        v_mul_lo_u32 v{g.vXD}, v{T}, s{g.sM0}
        v_lshl_add_u32 v{g.vXD}, v{T+1}, 4, v{g.vXD}''')
        a(f'''v_and_b32 v{T}, 15, v0
        v_lshrrev_b32 v{T+1}, 1, v{T}
        v_lshrrev_b32 v{T+2}, 4, v0
        v_xor_b32 v{T+1}, v{T+1}, v{T+2}
        v_lshlrev_b32 v{T+1}, 4, v{T+1}
        v_lshl_add_u32 v{T}, v{T}, 7, v{T+1}
        s_mul_i32 s{g.sM0}, s{g.sA}, {c.MT*2048}
        v_add_u32 v{g.vXR}, s{g.sM0}, v{T}
        v_xor_b32 v{g.vXR+1}, 64, v{g.vXR}''')
    elif xmode == 'frag':
        a(f'''s_lshr_b32 s{g.sM0}, s{g.sWv}, 1
        s_mul_i32 s{g.sM0}, s{g.sM0}, {xstride}
        s_and_b32 s{g.sCnt}, s{g.sWv}, 1
        s_lshl_b32 s{g.sCnt}, s{g.sCnt}, 10
        s_add_u32 s{g.sM0}, s{g.sM0}, s{g.sCnt}
        v_lshl_add_u32 v{g.vXD}, v0, 4, s{g.sM0}
        s_mul_i32 s{g.sM0}, s{g.sA}, {c.MT*2048}
        v_lshl_add_u32 v{g.vXR}, v0, 4, s{g.sM0}
        v_add_u32 v{g.vXR+1}, 1024, v{g.vXR}''')
    else:
        rg = c.BM // 64; lr = rg.bit_length() - 1
        a(f'''s_lshr_b32 s{g.sM0}, s{g.sWv}, {lr}
        s_mul_i32 s{g.sM0}, s{g.sM0}, {xstride}
        s_and_b32 s{g.sCnt}, s{g.sWv}, {rg-1}
        s_lshl_b32 s{g.sCnt}, s{g.sCnt}, 10
        s_add_u32 s{g.sM0}, s{g.sM0}, s{g.sCnt}
        v_lshl_add_u32 v{g.vXD}, v0, 4, s{g.sM0}''')
        a(f'''v_and_b32 v{T}, 15, v0
        v_lshrrev_b32 v{T+2}, 4, v0
        v_mul_u32_u24 v{T+2}, {c.BM*16}, v{T+2}
        v_lshl_add_u32 v{T}, v{T}, 4, v{T+2}
        s_mul_i32 s{g.sM0}, s{g.sA}, {c.MT*256}
        v_add_u32 v{g.vXR}, s{g.sM0}, v{T}
        v_add_u32 v{g.vXR+1}, {c.BM*64}, v{g.vXR}''')
    lpr = 64 // c.RPI; lgl = {32: 5, 16: 4}[lpr]
    a(f'''v_lshrrev_b32 v{T}, {lgl}, v0
    s_mul_i32 s{g.sM0}, s{g.sWv}, {c.RPI}
    v_add_u32 v{T}, s{g.sM0}, v{T}
    v_and_b32 v{T+1}, 3, v{T}
    v_lshlrev_b32 v{T+1}, 1, v{T+1}
    v_and_b32 v{T+2}, 8, v{T}
    v_or_b32 v{T+1}, v{T+1}, v{T+2}
    v_and_b32 v{T+2}, {lpr-1}, v0
    v_xor_b32 v{T+1}, v{T+1}, v{T+2}
    s_mov_b32 s{g.sM0}, {wstride}
    v_mul_lo_u32 v{g.vWD}, v{T}, s{g.sM0}
    v_lshl_add_u32 v{g.vWD}, v{T+1}, 4, v{g.vWD}''')
    a(f'''v_bfe_u32 v{T}, v0, 2, 2
    v_lshrrev_b32 v{T+1}, 4, v0
    v_lshl_add_u32 v{T+1}, v{T+1}, 3, v{T}
    v_mul_u32_u24 v{T+1}, {2*c.BN}, v{T+1}
    v_and_b32 v{T+2}, 3, v0
    v_lshl_add_u32 v{T+1}, v{T+2}, 3, v{T+1}
    v_add_u32 v{T+1}, {c.XB}, v{T+1}
    v_bfe_u32 v{T}, v0, 2, 3
    s_mul_i32 s{g.sM0}, s{g.sB}, {c.NT}
    v_xor_b32 v{T}, s{g.sM0}, v{T}
    v_lshl_add_u32 v{g.vWR}, v{T}, 5, v{T+1}''')
    for nt in range(1, c.NT): a(f'v_xor_b32 v{g.vWR+nt}, {nt << 5}, v{g.vWR}')
    a(f's_lshl_b32 s{g.sWX}, s{g.sWv}, 10\ns_mov_b32 s{g.sSl}, 0\ns_mov_b32 s{g.sRs}, 0')

def gemm_loop(a, tag, c, xmode, swap, nstage, x_i, x_stage, w_i, w_stage, zero=True, ldflav='', pre=None):
    g = G; MT, NT = c.MT, c.NT
    FS = 4 * (MT + NT)
    fx = lambda st, mt: g.FR + st * FS + 4 * mt
    fw = lambda st, nt: g.FR + st * FS + 4 * MT + 4 * nt
    mstep = 256 if xmode == 'chunk' else 2048
    def reads(st, ks):
        xs = [f'ds_read_b128 {v(fx(st,mt),4)}, v{g.vXR+ks} offset:{mt*mstep}' for mt in range(MT)]
        ws = [f'ds_read_b64_tr_b16 {v(fw(st,nt)+2*rd,2)}, v{g.vWR+nt} offset:{(32*ks+4*rd)*2*c.BN}' for nt in range(NT) for rd in range(2)]
        return [xs[0]] + ws + xs[1:]
    def dmas():
        d = []
        for i in range(c.NXI):
            d.append(f's_add_u32 m0, s{g.sWX}, {i*8192}\ns_add_u32 s{g.sM0}, s{g.sXo}, {i*x_i}\nbuffer_load_dwordx4 v{g.vXD}, s[{g.XS}:{g.XS+3}], s{g.sM0} offen{ldflav} lds')
        for i in range(c.NWI):
            d.append(f's_add_u32 m0, s{g.sWX}, {c.XB + i*8192}\ns_add_u32 s{g.sM0}, s{g.sWo}, {i*w_i}\nbuffer_load_dwordx4 v{g.vWD}, s[{g.WSR}:{g.WSR+3}], s{g.sM0} offen{ldflav} lds')
        return d
    def step(idx):
        return (f's_add_u32 s{idx}, s{idx}, 1\ns_cmp_eq_u32 s{idx}, {c.NS}\ns_cselect_b32 s{idx}, 0, s{idx}\n'
                f's_cselect_b32 s{g.sM0}, {(-c.NS*c.SS) & 0xffffffff:#x}, 0\ns_add_u32 s{g.sM0}, s{g.sM0}, {c.SS}\n')
    def advance():
        return (f's_add_u32 s{g.sXo}, s{g.sXo}, {x_stage}\ns_add_u32 s{g.sWo}, s{g.sWo}, {w_stage}\n' + step(g.sSl) +
                f's_add_u32 s{g.sWX}, s{g.sWX}, s{g.sM0}')
    def mfmas(st):
        m = []
        for mt in range(MT):
            for nt in (range(NT) if mt % 2 == 0 else reversed(range(NT))):
                d = v(c.acc(mt, nt), 4); X = v(fx(st, mt), 4); Wf = v(fw(st, nt), 4)
                m.append(f'v_mfma_f32_16x16x32_bf16 {d}, {Wf if swap else X}, {X if swap else Wf}, {d}')
        return m
    def weave(m, fill):
        per = max(1, -(-len(fill) // len(m)))
        for x in m:
            a(x)
            for _ in range(per):
                if fill: a(fill.pop(0))
        for f in fill: a(f)
    ND = c.NXI + c.NWI
    a('s_barrier')
    for _ in range(c.NS):
        for d in dmas(): a(d)
        a(advance())
    a(f's_mov_b32 s{g.sCnt}, {nstage}')
    if zero:
        for r in range(4 * MT * NT): a(f'v_mov_b32 v{g.ACC+r}, 0')
    if pre: pre()
    a(f's_waitcnt vmcnt({ND*(c.NS-1)})\ns_barrier')
    if g.TRACE: a('s_memrealtime s[32:33]\ns_memtime s[38:39]')
    for r in reads(0, 0): a(r)
    a(f'{tag}_LOOP:')
    a('s_waitcnt lgkmcnt(0)')
    tog = [step(g.sRs)] + [f'v_add_u32 v{r}, s{g.sM0}, v{r}' for r in [g.vXR, g.vXR+1] + [g.vWR+n for n in range(NT)]]
    weave(mfmas(0), reads(1, 1) + tog + [f's_sub_u32 s{g.sCnt}, s{g.sCnt}, 1'])
    a(f's_cmp_lt_u32 s{g.sCnt}, {c.NS}\ns_cbranch_scc1 {tag}_TAIL')
    a(f's_waitcnt vmcnt({ND*(c.NS-2)}) lgkmcnt(0)\ns_barrier')
    rd = reads(0, 0); dm = dmas(); fill = []
    while rd or dm:
        if dm: fill.append(dm.pop(0))
        for _ in range(2):
            if rd: fill.append(rd.pop(0))
    weave(mfmas(1), fill + [advance()])
    a(f's_branch {tag}_LOOP')
    a(f'{tag}_TAIL:')
    a('s_waitcnt vmcnt(0) lgkmcnt(0)\ns_barrier')
    weave(mfmas(1), reads(0, 0))
    a(f's_cmp_lg_u32 s{g.sCnt}, 0\ns_cbranch_scc1 {tag}_LOOP')
    if g.TRACE: a('s_memrealtime s[34:35]\ns_memtime s[42:43]')
    a('s_waitcnt lgkmcnt(0)\ns_nop 7')
```

```python
from asmlib import *
from layout import *
from gemm import *
from rec import srd, WS

sRB, sCB = 77, 78
sTY = 79
sEO = 80
W = f's[{WS}:{WS+3}]'

def g1_operands(a, c):
    g = G
    a(f'''s_load_dwordx2 s[4:5], s[0:1], 0
    s_cmp_eq_u32 s{sTY}, 0
    s_cselect_b32 s{g.sM0}, 24, 32
    s_cmp_eq_u32 s{sTY}, 2
    s_cselect_b32 s{g.sM0}, 16, s{g.sM0}
    s_cmp_eq_u32 s{sTY}, 3
    s_cselect_b32 s{g.sM0}, 104, s{g.sM0}
    s_load_dwordx2 s[6:7], s[0:1], s{g.sM0}
    s_mul_i32 s{g.sXo}, s{sRB}, {c.BM*2048}
    s_mul_i32 s{g.sWo}, s{sCB}, {2*c.BN}
    s_waitcnt lgkmcnt(0)''')
    srd(a, g.XS, 4, 4*MB)
    srd(a, g.WSR, 6, 8*MB)

def unit_index(a, c, dst):
    g = G
    a(f'''s_mul_i32 s{dst}, s{sRB}, {c.BM//32}
    s_mul_i32 s{g.sM0}, s{g.sA}, {c.MT//2}
    s_add_u32 s{dst}, s{dst}, s{g.sM0}
    s_lshl_b32 s{dst}, s{dst}, 5
    s_mul_i32 s{g.sM0}, s{sCB}, {c.BN//128}
    s_add_u32 s{dst}, s{dst}, s{g.sM0}
    s_lshr_b32 s{g.sM0}, s{g.sB}, {1 if c.NT == 4 else 0}
    s_add_u32 s{dst}, s{dst}, s{g.sM0}''')

def gen_gemm1(a, tag, c, done, stflav='', ldflav='', with_f=True):
    g = G; T = g.vT; MT, NT = c.MT, c.NT; acc = c.acc
    assert NT == 4
    g1_operands(a, c)
    if with_f: a(f's_cmp_eq_u32 s{sTY}, 3\ns_cbranch_scc1 {tag}_F')
    gemm_setup(a, c, 'row', 2048, 8192)
    a(f's_cmp_eq_u32 s{sTY}, 1\ns_cbranch_scc1 {tag}_V')
    P = g.FR
    def pack(p, x, y):
        a(f'v_cvt_pk_bf16_f32 v{p}, v{x}, v{x+1}\nv_cvt_pk_bf16_f32 v{p+1}, v{x+2}, v{x+3}\nv_cvt_pk_bf16_f32 v{p+2}, v{y}, v{y+1}\nv_cvt_pk_bf16_f32 v{p+3}, v{y+2}, v{y+3}')
    gemm_loop(a, tag+'_K', c, 'row', True, 16, 64*2048, 128, 8*c.RPI*8192, 64*8192, ldflav=ldflav)
    unit_index(a, c, sEO)
    a(f'''s_lshl_b32 s{sEO}, s{sEO}, 14
    s_and_b32 s{g.sM0}, s{g.sB}, 1
    s_lshl_b32 s{g.sM0}, s{g.sM0}, 11
    s_add_u32 s{sEO}, s{sEO}, s{g.sM0}
    s_add_u32 s{sEO}, s{sEO}, {KV_BASE}
    v_lshlrev_b32 v{T}, 4, v0''')
    n = 0
    for mt in range(MT):
        for p_ in range(2):
            p = P + 4 * (n % 8); n += 1
            pack(p, acc(mt, 2*p_), acc(mt, 2*p_+1))
            a(f'buffer_store_dwordx4 {v(p,4)}, v{T}, {W}, s{sEO} offen offset:{p_*1024}{stflav}')
        a(f's_add_u32 s{sEO}, s{sEO}, {4096 if mt % 2 == 0 else 32*16384 - 4096}')
    a(f's_branch {done}')
    a(f'{tag}_V:')
    if with_f:
        a(f's_mov_b32 s{sEO}, {8*c.RPI*8192}\ns_mov_b32 s{sEO+1}, {64*8192}\ns_branch {tag}_VF')
        a(f'{tag}_F:')
        a(f's_mov_b32 s{g.WSR+2}, {WS_SIZE}\ns_add_u32 s{g.sWo}, s{g.sWo}, {FD_BASE}')
        gemm_setup(a, c, 'row', 2048, 2048)
        a(f's_mov_b32 s{sEO}, {8*c.RPI*2048}\ns_mov_b32 s{sEO+1}, {64*2048}')
        a(f'{tag}_VF:')
        a(f's_lshl_b32 s{sEO+2}, s{sEO}, 1\ns_add_u32 s{sEO+3}, s{sEO+2}, s{sEO}')
        class RS:
            def __rmul__(self, i): return ['0', f's{sEO}', f's{sEO+2}', f's{sEO+3}'][i]
        gemm_loop(a, tag+'_VF', c, 'row', False, 16, 64*2048, 128, RS(), f's{sEO+1}', ldflav=ldflav)
        a(f's_cmp_eq_u32 s{sTY}, 3\ns_cbranch_scc1 {tag}_FE')
    else:
        gemm_loop(a, tag+'_VF', c, 'row', False, 16, 64*2048, 128, 8*c.RPI*8192, 64*8192, ldflav=ldflav)
    unit_index(a, c, sEO)
    a(f'''s_lshl_b32 s{sEO}, s{sEO}, 14
    s_and_b32 s{g.sM0}, s{g.sB}, 1
    s_lshl_b32 s{g.sM0}, s{g.sM0}, 12
    s_add_u32 s{sEO}, s{sEO}, s{g.sM0}
    s_add_u32 s{sEO}, s{sEO}, {KV_BASE + 8192}
    v_bfe_u32 v{T}, v0, 1, 3
    v_lshlrev_b32 v{T}, 4, v{T}
    v_and_b32 v{T+1}, 1, v0
    v_lshl_add_u32 v{T}, v{T+1}, 10, v{T}
    v_lshrrev_b32 v{T+1}, 4, v0
    v_lshl_add_u32 v{T}, v{T+1}, 8, v{T}''')
    n = 0
    for s_ in range(MT // 2):
        for nt in range(NT):
            p = P + 4 * (n % 8); n += 1
            pack(p, acc(2*s_, nt), acc(2*s_+1, nt))
            a(f'buffer_store_dwordx4 {v(p,4)}, v{T}, {W}, s{sEO} offen offset:{(nt>>1)*2048+(nt&1)*128}{stflav}')
        a(f's_add_u32 s{sEO}, s{sEO}, {32*16384}')
    a(f's_branch {done}')
    if not with_f: return
    a(f'{tag}_FE:')
    a(f'''s_mul_i32 s{sEO}, s{sCB}, {c.BN}
    s_lshl_b32 s{g.sM0}, s{g.sB}, 6
    s_add_u32 s{sEO}, s{sEO}, s{g.sM0}
    s_lshl_b32 s{sEO}, s{sEO}, 12
    s_mul_i32 s{g.sM0}, s{sRB}, {c.BM*2}
    s_add_u32 s{sEO}, s{sEO}, s{g.sM0}
    s_mul_i32 s{g.sM0}, s{g.sA}, {MT*32}
    s_add_u32 s{sEO}, s{sEO}, s{g.sM0}
    s_add_u32 s{sEO}, s{sEO}, {X1T_BASE}
    v_and_b32 v{T}, 15, v0
    v_lshlrev_b32 v{T}, 12, v{T}
    v_lshrrev_b32 v{T+1}, 4, v0
    v_lshl_add_u32 v{T}, v{T+1}, 4, v{T}''')
    n = 0
    for nt in range(NT):
        for s_ in range(MT // 2):
            p = P + 4 * (n % 8); n += 1
            pack(p, acc(2*s_, nt), acc(2*s_+1, nt))
            a(f'buffer_store_dwordx4 {v(p,4)}, v{T}, {W}, s{sEO} offen offset:{s_*64}{stflav}')
        a(f's_add_u32 s{sEO}, s{sEO}, {16*4096}')
    a(f's_branch {done}')
```

```python
from asmlib import *
from layout import *
from gemm import *
from gemm1 import sRB, sCB, g1_operands, unit_index
from rec import srd, WS, TS, f2u, sP0
import math
W = f's[{WS}:{WS+3}]'
sWv = G.sWv
sTK = 84
sU0, sU1, sU2, sU3 = 85, 86, 87, 88

def trig_row(a, dst, fv, ph, base, scale):
    a(f'v_mad_u32_u24 v20, v{base}, v{fv}, v{ph}')
    for e in range(8):
        if e: a(f'v_add_u32 v20, v20, v{fv}')
        a(f'v_and_b32 v{21+e}, 1023, v20\nv_cvt_f32_u32 v{21+e}, v{21+e}\nv_mul_f32 v{21+e}, {f2u(1/1024):#x}, v{21+e}')
    for e in range(8): a(f'v_cos_f32 v{21+e}, v{21+e}')
    if scale is not None:
        a('s_nop 0')
        for e in range(8): a(f'v_mul_f32 v{21+e}, v{scale}, v{21+e}')
    a('s_nop 0')
    for j in range(4): a(f'v_cvt_pk_bf16_f32 v{dst+j}, v{21+2*j}, v{22+2*j}')

def gen_prep(a, tag, stflav=''):
    a(f'''s_lshl_b32 s{sU0}, s{sTK}, 2
    s_lshr_b32 s{sU1}, s{sWv}, 1
    s_add_u32 s{sU0}, s{sU0}, s{sU1}
    s_and_b32 s{sU1}, s{sWv}, 1
    s_lshl_b32 s{sU1}, s{sU1}, 6
    v_add_u32 v1, s{sU1}, v0
    v_lshlrev_b32 v2, 3, v1
    s_lshr_b32 s{sU2}, s{sU0}, 1
    s_and_b32 s{sU3}, s{sU0}, 1
    s_lshl_b32 s{sU3}, s{sU3}, 8
    s_cmp_eq_u32 s{sU0}, 1
    s_cselect_b32 s{sU2}, 512, s{sU2}
    s_cselect_b32 s{sU3}, 0, s{sU3}
    v_mov_b32 v3, s{sU2}
    v_mov_b32 v4, s{sU3}
    s_mov_b32 s{sU2}, {f2u(2.0**-20):#x}
    s_cmp_lt_u32 s{sU0}, 2
    s_cselect_b32 s{sU2}, {f2u(2.0**-21):#x}, s{sU2}
    v_mov_b32 v5, s{sU2}''')
    trig_row(a, 8, 3, 4, 2, 5)
    a(f'''v_lshlrev_b32 v6, 4, v1
    s_lshl_b32 s{sU2}, s{sU0}, 11
    s_add_u32 s{sU3}, s{sU2}, {FI_BASE}
    buffer_store_dwordx4 v[8:11], v6, {W}, s{sU3} offen{stflav}''')
    a(f'v_lshlrev_b32 v2, 2, v1\nv_mul_u32_u24 v20, s{sU0}, v2')
    for j in range(4):
        if j: a(f'v_add_u32 v20, s{sU0}, v20')
        a(f'v_and_b32 v{21+j}, 1023, v20\nv_cvt_f32_u32 v{21+j}, v{21+j}\nv_mul_f32 v{21+j}, {f2u(1/1024):#x}, v{21+j}')
    for j in range(4): a(f'v_sin_f32 v{25+j}, v{21+j}')
    for j in range(4): a(f'v_cos_f32 v{21+j}, v{21+j}')
    a(f'''s_bitcmp1_b32 s{sU0}, 0
    s_cselect_b32 s{sU3}, 1.0, -1.0
    v_mov_b32 v3, s{sU3}
    v_cmp_eq_u32 vcc, 0, v1
    s_nop 1
    v_cndmask_b32 v25, v25, v3, vcc''')
    for j in range(4): a(f'v_cvt_pk_bf16_f32 v{12+j}, v{21+j}, -v{25+j}')
    a(f's_add_u32 s{sU3}, s{sU2}, {FD_BASE}\nbuffer_store_dwordx4 v[12:15], v6, {W}, s{sU3} offen{stflav}')
    a(f'''s_load_dwordx2 s[4:5], s[0:1], 0
    s_load_dwordx2 s[6:7], s[0:1], 80
    s_lshl_b32 s{sU0}, s{sTK}, 3
    s_add_u32 s{sU0}, s{sU0}, s{sWv}
    s_lshl_b32 s{sU1}, s{sU0}, 11
    v_lshlrev_b32 v1, 4, v0
    s_waitcnt lgkmcnt(0)''')
    srd(a, TS, 4, 4*MB)
    a(f'buffer_load_dwordx4 v[32:35], v1, s[{TS}:{TS+3}], s{sU1} offen\nbuffer_load_dwordx4 v[36:39], v1, s[{TS}:{TS+3}], s{sU1} offen offset:1024')
    srd(a, TS, 6, 2048)
    a(f'buffer_load_dwordx4 v[40:43], v1, s[{TS}:{TS+3}], 0 offen\nbuffer_load_dwordx4 v[44:47], v1, s[{TS}:{TS+3}], 0 offen offset:1024')
    a('v_mov_b32 v2, 0\ns_waitcnt vmcnt(0)')
    for j in range(8):
        a(f'''v_lshlrev_b32 v3, 16, v{32+j}
        v_and_b32 v4, 0xffff0000, v{32+j}
        v_lshlrev_b32 v5, 16, v{40+j}
        v_and_b32 v7, 0xffff0000, v{40+j}
        v_mul_f32 v3, v3, v5
        v_mul_f32 v4, v4, v7
        v_cvt_pk_bf16_f32 v3, v3, v4
        v_lshlrev_b32 v4, 16, v3
        v_and_b32 v3, 0xffff0000, v3
        v_add_f32 v2, v2, v4
        v_add_f32 v2, v2, v3''')
    for sh in ('row_shr:1', 'row_shr:2', 'row_shr:4', 'row_shr:8'):
        a(f's_nop 1\nv_add_f32_dpp v2, v2, v2 {sh} row_mask:0xf bank_mask:0xf bound_ctrl:0')
    a('''v_mov_b32 v3, v2
    s_nop 1
    v_permlane16_swap_b32 v2, v3
    v_add_f32 v2, v2, v3
    v_mov_b32 v3, v2
    s_nop 1
    v_permlane32_swap_b32 v2, v3
    v_add_f32 v2, v2, v3''')
    rnd = lambda r: a(f'v_cvt_pk_bf16_f32 v{r}, v{r}, v{r}\nv_lshlrev_b32 v{r}, 16, v{r}')
    rnd(2)
    a(f'''v_mul_f32 v2, {f2u(-math.log2(math.e)):#x}, v2
    v_exp_f32 v2, v2
    s_nop 0
    v_add_f32 v2, 1.0, v2
    v_rcp_f32 v2, v2
    s_nop 0''')
    rnd(2)
    a('v_sub_f32 v3, 1.0, v2')
    rnd(3)
    a(f'''s_lshl_b32 s{sU1}, s{sU0}, 2
    s_add_u32 s{sU1}, s{sU1}, {G_BASE}
    s_add_u32 s{sU2}, s{sU1}, 8192
    s_mov_b64 exec, 0x8000
    buffer_store_dword v2, off, {W}, s{sU1}{stflav}
    buffer_store_dword v3, off, {W}, s{sU2}{stflav}
    s_mov_b64 exec, -1''')

def gen_wt(a, tag, stflav=''):
    a(f'''s_load_dwordx4 s[4:7], s[0:1], 64
    s_mul_i32 s{sU0}, s{sTK}, 32832
    s_lshl_b32 s{sU1}, s{sWv}, 10
    s_add_u32 s{sU0}, s{sU0}, s{sU1}
    v_lshlrev_b32 v1, 4, v0
    s_barrier
    s_waitcnt lgkmcnt(0)''')
    for arr in range(2):
        srd(a, TS, 4 + 2*arr, 2048*1026)
        for i in range(5):
            if i == 4: a(f's_cmp_lg_u32 s{sWv}, 0\ns_cbranch_scc1 {tag}_S{arr}')
            a(f's_add_u32 m0, s{sU1}, {arr*33792 + i*8192}\ns_add_u32 s{sU2}, s{sU0}, {i*8192}')
            a(f'buffer_load_dwordx4 v1, s[{TS}:{TS+3}], s{sU2} offen lds')
        a(f'{tag}_S{arr}:')
    a(f'''v_and_b32 v2, 31, v0
    v_lshrrev_b32 v3, 5, v0
    v_mul_u32_u24 v4, 1026, v2
    v_lshl_add_u32 v4, v3, 1, v4
    s_lshl_b32 s{sU2}, s{sWv}, 2
    v_add_u32 v4, s{sU2}, v4
    v_lshlrev_b32 v5, 13, v3
    v_lshl_add_u32 v5, v2, 2, v5
    s_lshl_b32 s{sU0}, s{sWv}, 14
    s_lshl_b32 s{sU2}, s{sTK}, 7
    s_add_u32 s{sU0}, s{sU0}, s{sU2}
    s_add_u32 s{sU0}, s{sU0}, {WT_BASE}
    s_waitcnt vmcnt(0)
    s_barrier''')
    for j0 in range(0, 33, 6):
        js = list(range(j0, min(33, j0+6)))
        for q, j in enumerate(js):
            a(f'ds_read_u16 v{8+2*q}, v4 offset:{32*j}\nds_read_u16 v{9+2*q}, v4 offset:{33792+32*j}')
        a('s_waitcnt lgkmcnt(0)')
        for q, j in enumerate(js):
            a(f'v_lshl_or_b32 v{24+j}, v{9+2*q}, 16, v{8+2*q}')
            a(f'buffer_store_dword v{24+j}, v5, {W}, s{sU0} offen{stflav}\ns_add_u32 s{sU0}, s{sU0}, {16*8192}')

CQ = Cfg(256, 256, 4, 2, 2)
def gen_qattn(a, tag, done, fail, sBudget, ldflav='', stflav=''):
    g = G; c = CQ; acc = c.acc
    g1_operands(a, c)
    gemm_setup(a, c, 'row', 2048, 8192)
    gemm_loop(a, tag, c, 'row', True, 16, 64*2048, 128, 8*c.RPI*8192, 64*8192)
    vLD, vTL, vVR, vOS, vGL, vM, vT, vM2 = 1, 2, 3, 4, 5, 6, 7, 8
    ONES, L, PM, PX, Q, S, MK, CM, GT = 16, 20, 24, 26, 32, 96, 108, 112, 116
    KX, VX, T, VM, OD = 128, 160, 192, 208, 224
    sKVo, sTo, sOo, sX_ = sU0, sU1, sU2, sU3
    def packq(mt):
        for ks in range(4):
            p = Q + (mt*4 + ks)*4; x, y = acc(mt, 2*ks), acc(mt, 2*ks+1)
            a(f'v_cvt_pk_bf16_f32 v{p}, v{x}, v{x+1}\nv_cvt_pk_bf16_f32 v{p+1}, v{x+2}, v{x+3}\nv_cvt_pk_bf16_f32 v{p+2}, v{y}, v{y+1}\nv_cvt_pk_bf16_f32 v{p+3}, v{y+2}, v{y+3}')
    def ld(dst, n, sbase, off, vo, step=1024):
        for i in range(n):
            if i % 4 == 0: a(f's_add_u32 s{sX_}, s{sbase}, {off + (i//4)*4096}')
            a(f'buffer_load_dwordx4 {v(dst+4*i,4)}, v{vo}, {W}, s{sX_} offen offset:{(i%4)*step}{ldflav}')
    unit_index(a, c, 89)
    a(f"""s_lshl_b32 s{sKVo}, s89, 14
    s_lshr_b32 s90, s89, 5
    s_and_b32 s91, s89, 31
    s_lshl_b32 s{sOo}, s90, 18
    s_lshl_b32 s{sX_}, s91, 12
    s_add_u32 s{sOo}, s{sOo}, s{sX_}
    s_add_u32 s{sOo}, s{sOo}, {O_BASE}
    s_lshr_b32 s91, s91, 3
    s_lshl_b32 s91, s91, 6
    s_add_u32 s91, s91, s90
    s_lshl_b32 s91, s91, 7
    s_add_u32 s91, s91, {CNT_BASE + C_KVM*128}
    buffer_load_dword v10, off, {W}, s91 sc1
    buffer_load_dword v11, off, {W}, s91 offset:128 sc1
    s_add_u32 s{sTo}, s{sKVo}, {KVM_BASE}
    s_lshr_b32 s{sX_}, s{sTo}, 8
    s_xor_b32 s{sX_}, s{sX_}, s{sP0}
    s_and_b32 s{sX_}, s{sX_}, 0x2000
    s_add_u32 s{sTo}, s{sTo}, s{sX_}
    s_lshl_b32 s90, s90, 7
    s_add_u32 s90, s90, {G_BASE}
    v_lshlrev_b32 v{vLD}, 4, v0
    v_and_b32 v{vM}, 15, v0
    v_lshlrev_b32 v{vGL}, 2, v{vM}""")
    packq(0); ld(KX, 8, sKVo, KV_BASE, vLD)
    packq(1); ld(VX, 8, sKVo, KV_BASE + 8192, vLD)
    for i in range(4): a(f'buffer_load_dword v{GT+i}, v{vGL}, {W}, s90 offen offset:{64*i}{ldflav}')
    packq(2); packq(3)
    a(f"""v_or_b32 v{vTL}, 128, v{vLD}
    v_and_b32 v{vVR}, 511, v{vLD}""")
    def poll(lbl, reg, off, first_wait):
        a(f"""s_waitcnt vmcnt({first_wait})
{lbl}:
        v_cmp_gt_u32 vcc, 32, v{reg}
        s_cbranch_vccz {lbl}_D
        s_sleep 2
        buffer_load_dword v{reg}, off, {W}, s91 offset:{off} sc1
        s_sub_u32 s{sBudget}, s{sBudget}, 1
        s_cbranch_scc1 {fail}
        s_waitcnt vmcnt(0)
        s_branch {lbl}
{lbl}_D:""")
    poll(tag+'_P0', 10, 0, 20)
    ld(T, 4, sTo, 0, vTL); ld(VM, 4, sTo, 4096, vVR, 512)
    a(f"""v_lshrrev_b32 v{vT}, 4, v0
    v_lshlrev_b32 v{vT}, 2, v{vT}
    v_sub_u32 v{vM}, v{vM}, v{vT}
    v_mov_b32 v9, 0xff800000""")
    for q in range(4): a(f'v_cmp_gt_i32 vcc, {q}, v{vM}\ns_nop 1\nv_cndmask_b32 v{MK+q}, 0, v9, vcc')
    a('v_cmp_gt_u32 vcc, 32, v0\ns_nop 1')
    for q in range(4): a(f'v_cndmask_b32 v{CM+q}, 0, v9, vcc')
    for q in range(4): a(f'v_mov_b32 v{ONES+q}, 0x3f803f80')
    a(f's_mov_b32 s40, {f2u(128**-0.5 * math.log2(math.e)):#x}\ns_mov_b32 s41, {f2u(-128**-0.5 * math.log2(math.e)):#x}')
    for sg in range(2):
        for qt in range(2):
            nk = qt + 1
            if qt == 0 and sg == 0: a('s_waitcnt vmcnt(4)')
            if qt == 0 and sg == 1:
                a(f's_cmp_lg_u32 s89, 0\ns_cbranch_scc1 {tag}_E1')
                poll(tag+'_P1', 11, 128, 63)
                ld(T, 4, sTo, 32*16384, vTL); ld(VM, 4, sTo, 32*16384 + 4096, vVR, 512)
                a(f's_waitcnt vmcnt(0)\n{tag}_E1:\ns_waitcnt vmcnt(16)')
            for k in range(4):
                qk = v(Q+((sg*2+qt)*4+k)*4,4)
                a(f'v_mfma_f32_16x16x32_bf16 {v(S,4)}, {v(T+4*k,4)}, {qk}, {v(CM,4) if k==0 else v(S,4)}')
                for t in range(nk):
                    d = v(S+4+4*t,4)
                    a(f'v_mfma_f32_16x16x32_bf16 {d}, {v(KX+(t*4+k)*4,4)}, {qk}, {(v(MK,4) if t == qt else "0") if k==0 else d}')
            if sg == 0 and qt == 1:
                a(f'v_readfirstlane_b32 s89, v11')
                ld(KX, 8, sKVo, KV_BASE + 32*16384, vLD)
                a(f's_lshr_b32 s89, s89, 5\ns_cbranch_scc0 {tag}_N1')
                ld(T, 4, sTo, 32*16384, vTL)
                a(f'{tag}_N1:')
            else: a('s_nop 7')
            a(f"""v_max3_f32 v{vM}, v{S}, v{S+1}, v{S+2}
            v_max3_f32 v{vM2}, v{S+3}, v{S+4}, v{S+5}
            v_max3_f32 v{vM}, v{vM}, v{S+6}, v{S+7}""")
            if nk == 2: a(f'v_max3_f32 v{vM2}, v{vM2}, v{S+8}, v{S+9}\nv_max3_f32 v{vM}, v{vM}, v{S+10}, v{S+11}')
            a(f"""v_max_f32 v{vT}, v{vM}, v{vM2}
            v_max_f32 v{vM}, v{vM}, v{vM2}
            s_nop 1
            v_permlane32_swap_b32 v{vM}, v{vT}
            v_max_f32 v{vM2}, v{vM}, v{vT}
            v_max_f32 v{vM}, v{vM}, v{vT}
            s_nop 1
            v_permlane16_swap_b32 v{vM}, v{vM2}
            v_max_f32 v{vM}, v{vM}, v{vM2}
            v_mul_f32 v{vM2}, s41, v{vM}""")
            ne = 4 + 4*nk
            for q in range(0, ne, 2): a(f'v_pk_fma_f32 {v(S+q,2)}, {v(S+q,2)}, s[40:41], {v(vM2,2)} op_sel_hi:[1,0,0]')
            for q in range(ne): a(f'v_exp_f32 v{S+q}, v{S+q}')
            a(f'v_cvt_pk_bf16_f32 v{PM}, v{S}, v{S+1}\nv_cvt_pk_bf16_f32 v{PM+1}, v{S+2}, v{S+3}')
            for q in range(4):
                a(f'v_cvt_pk_bf16_f32 v{PX+q}, v{S+4+2*q}, v{S+5+2*q}' if q < 2*nk else f'v_mov_b32 v{PX+q}, 0')
            if qt == 0: a(f's_waitcnt vmcnt({0 if sg == 0 else 4})')
            a(f'v_mfma_f32_16x16x16_bf16 {v(L,4)}, {v(ONES,2)}, {v(PM,2)}, 0')
            for t in range(8): a(f'v_mfma_f32_16x16x16_bf16 {v(OD+4*t,4)}, {v(VM+2*t,2)}, {v(PM,2)}, 0')
            a(f'v_mfma_f32_16x16x32_bf16 {v(L,4)}, {v(ONES,4)}, {v(PX,4)}, {v(L,4)}')
            for t in range(8): a(f'v_mfma_f32_16x16x32_bf16 {v(OD+4*t,4)}, {v(VX+4*t,4)}, {v(PX,4)}, {v(OD+4*t,4)}')
            if sg == 0 and qt == 1:
                ld(VX, 8, sKVo, KV_BASE + 32*16384 + 8192, vLD)
                a(f's_cmp_eq_u32 s89, 0\ns_cbranch_scc1 {tag}_N2')
                ld(VM, 4, sTo, 32*16384 + 4096, vVR, 512)
                a(f'{tag}_N2:')
            a(f'v_rcp_f32 v{L}, v{L}\ns_nop 0\nv_mul_f32 v{L}, v{L}, v{GT+2*sg+qt}')
            for q in range(0, 32, 2): a(f'v_pk_mul_f32 {v(OD+q,2)}, {v(OD+q,2)}, {v(L,2)} op_sel_hi:[1,0]')
            for n in range(4):
                for q in range(4): a(f'v_cvt_pk_bf16_f32 v{OD+8*n+q}, v{OD+8*n+q}, v{OD+8*n+4+q}')
                a(f'buffer_store_dwordx4 {v(OD+8*n,4)}, v{vLD}, {W}, s{sOo} offen offset:{1024*n}{stflav}')
            a(f's_add_u32 s{sOo}, s{sOo}, {16*8192}')
    a(f's_branch {done}')

F_W64, F_W32, F_TW1, F_TW2, F_ST = 0, 24576, 30720, 47104, 65536
def gen_fft_tables(a):
    a('s_barrier\nv_and_b32 v1, 31, v0\nv_lshrrev_b32 v2, 5, v0\nv_lshlrev_b32 v2, 2, v2\nv_lshlrev_b32 v3, 4, v0')
    def frag(n_reg, k0_reg, mask, inv, dst_s):
        for e in range(8):
            a(f'v_add_u32 v{8+e}, {8*(e>>2)+(e&3)}, v{k0_reg}\nv_mul_u32_u24 v{8+e}, v{8+e}, v{n_reg}\nv_and_b32 v{8+e}, {mask}, v{8+e}\nv_cvt_f32_u32 v{8+e}, v{8+e}\nv_mul_f32 v{8+e}, {f2u(inv):#x}, v{8+e}')
        for e in range(8): a(f'v_sin_f32 v{16+e}, v{8+e}')
        for e in range(8): a(f'v_cos_f32 v{8+e}, v{8+e}')
        a('s_nop 0')
        for j in range(4):
            a(f'v_cvt_pk_bf16_f32 v{24+j}, v{8+2*j}, v{9+2*j}\nv_cvt_pk_bf16_f32 v{28+j}, v{16+2*j}, v{17+2*j}\nv_cvt_pk_bf16_f32 v{32+j}, -v{16+2*j}, -v{17+2*j}')
    a(f'''s_lshr_b32 s{sU0}, s{sWv}, 2
    s_lshl_b32 s{sU0}, s{sU0}, 5
    v_add_u32 v4, s{sU0}, v1
    s_and_b32 s{sU0}, s{sWv}, 3
    s_lshl_b32 s{sU0}, s{sU0}, 4
    v_add_u32 v5, s{sU0}, v2
    s_lshl_b32 s{sU0}, s{sWv}, 10
    v_add_u32 v6, s{sU0}, v3''')
    frag(4, 5, 63, 1/64, None)
    for kd in range(3): a(f'ds_write_b128 v6, {v(24+4*kd,4)} offset:{F_W64+kd*8192}')
    a(f'''s_and_b32 s{sU0}, s{sWv}, 1
    s_lshl_b32 s{sU1}, s{sU0}, 4
    v_add_u32 v5, s{sU1}, v2
    s_lshl_b32 s{sU0}, s{sU0}, 10
    v_add_u32 v7, s{sU0}, v3''')
    frag(1, 5, 31, 1/32, None)
    for kd in range(3): a(f'ds_write_b128 v7, {v(24+4*kd,4)} offset:{F_W32+kd*2048}')
    a(f'''s_lshl_b32 s{sU0}, s{sWv}, 11
    v_add_u32 v6, s{sU0}, v3
    s_lshl_b32 s{sU0}, s{sWv}, 3
    v_add_u32 v5, s{sU0}, v2
    s_and_b32 s{sU0}, s{sU0}, 31
    v_add_u32 v7, s{sU0}, v2''')
    for (n_reg, k_reg, off) in ((1, 5, F_TW1), (4, 7, F_TW2)):
        for b in range(4):
            a(f'v_add_u32 v{8+b}, {b}, v{k_reg}\nv_mul_u32_u24 v{8+b}, v{8+b}, v{n_reg}\nv_cvt_f32_u32 v{8+b}, v{8+b}\nv_mul_f32 v{8+b}, {f2u(1/2048):#x}, v{8+b}')
        for b in range(4): a(f'v_sin_f32 v{16+b}, v{8+b}')
        for b in range(4): a(f'v_cos_f32 v{12+b}, v{8+b}')
        a(f's_nop 0\nds_write_b128 v6, v[12:15] offset:{off}\nds_write_b128 v6, v[16:19] offset:{off+1024}\ns_waitcnt lgkmcnt(0)')
    a('s_waitcnt lgkmcnt(0)\ns_barrier')

def gen_fft(a, tag, ldflav='', stflav=''):
    vL16, vTR, vWT, vXW, vT = 1, 2, 3, 4, 6
    TF = 8
    OPR, OPI = 32, 48
    AR, AI = 64, 200
    FL = 128; SV = 160; TM = 192
    sF, sP = sU0, sU1
    a(f'''s_lshl_b32 s{sF}, s{sTK}, 3
    s_add_u32 s{sF}, s{sF}, s{sWv}
    v_lshlrev_b32 v{vL16}, 4, v0
    s_lshl_b32 s{sU2}, s{sWv}, 13
    s_add_u32 s{sU2}, s{sU2}, {F_ST}
    v_bfe_u32 v{vT}, v0, 2, 2
    v_lshrrev_b32 v{vT+1}, 5, v0
    v_lshl_add_u32 v{vT}, v{vT+1}, 2, v{vT}
    v_lshlrev_b32 v{vTR}, 7, v{vT}
    v_bfe_u32 v{vT}, v0, 4, 1
    v_lshl_add_u32 v{vTR}, v{vT}, 3, v{vTR}
    v_and_b32 v{vT}, 3, v0
    v_lshl_add_u32 v{vTR}, v{vT}, 4, v{vTR}
    v_add_u32 v{vTR}, s{sU2}, v{vTR}
    v_and_b32 v{vT}, 31, v0
    v_lshlrev_b32 v{vWT}, 2, v{vT}
    v_lshl_add_u32 v{vWT}, v{vT+1}, 9, v{vWT}
    v_lshlrev_b32 v{vXW}, 4, v{vT}
    v_lshl_add_u32 v{vXW}, v{vT+1}, 12, v{vXW}
    s_lshr_b32 s{sU3}, s{sWv}, 2
    s_lshl_b32 s{sU3}, s{sU3}, 15
    v_add_u32 v{vXW}, s{sU3}, v{vXW}
    s_and_b32 s{sU3}, s{sWv}, 3
    s_lshl_b32 s{sU3}, s{sU3}, 2
    s_add_u32 s{sU3}, s{sU3}, {F_ST}
    v_add_u32 v{vXW}, s{sU3}, v{vXW}
    s_cmp_eq_u32 s{sF}, 0
    s_cselect_b32 s{sP}, 1, 0
    s_barrier
{tag}_PASS:''')
    a(f'''s_lshl_b32 s89, s{sF}, 1
    s_add_u32 s89, s89, s{sP}
    s_lshl_b32 s89, s89, 12
    s_add_u32 s89, s89, {X1T_BASE}
    s_add_u32 s90, s89, 4096
    s_cmp_eq_u32 s{sF}, 0
    s_cselect_b32 s90, {WS_SIZE}, s90
    s_mov_b32 m0, s{sU2}
    s_lshl_b32 s91, s{sP}, 9
    s_add_u32 s91, s91, s{sF}
    s_lshl_b32 s91, s91, 13
    s_add_u32 s91, s91, {WT_BASE}''')
    for i in range(4): a(f'buffer_load_dwordx4 v{vL16}, {W}, s89 offen offset:{i*1024}{ldflav} lds')
    a(f's_add_u32 m0, s{sU2}, 4096\ns_add_u32 s92, s91, 4096')
    for i in range(4): a(f'buffer_load_dwordx4 v{vL16}, {W}, s90 offen offset:{i*1024}{ldflav} lds')
    for blk in range(2):
        for i in range(16):
            a(f'buffer_load_dword v{FL+16*blk+i}, v{vWT}, {W}, s{91+blk} offen offset:{(8*(i>>2)+(i&3))*128}{ldflav}')
    a('s_waitcnt vmcnt(32)')
    for c, OP in ((0, OPR), (1, OPI)):
        for blk in range(2):
            for ks in range(2):
                for rd in range(2):
                    a(f'ds_read_b64_tr_b16 {v(OP+8*blk+4*ks+2*rd,2)}, v{vTR} offset:{c*4096+(16*ks+8*rd)*128+blk*64}')
        a('s_waitcnt lgkmcnt(0)')
    def dft(groups, tabbase, kstride, inverse, data_is_A):
        def rdt(gi):
            st = TF + 12*(gi & 1)
            for kd in range(3): a(f'ds_read_b128 {v(st+4*kd,4)}, v{vL16} offset:{tabbase+kd*kstride+groups[gi][0]*1024}')
        rdt(0)
        for gi, (ti, items) in enumerate(groups):
            if gi + 1 < len(groups): rdt(gi+1); a('s_waitcnt lgkmcnt(3)')
            else: a('s_waitcnt lgkmcnt(0)')
            st = TF + 12*(gi & 1); C, Sp, Sn = v(st,4), v(st+4,4), v(st+8,4)
            for (blk, oi, first) in items:
                dr, di = v(AR+16*blk,16), v(AI+16*blk,16); xr, xi = v(OPR+4*oi,4), v(OPI+4*oi,4)
                for (d, t, x, f0) in ((dr, C, xr, first), (di, C, xi, first), (dr, Sn if inverse else Sp, xi, False), (di, Sp if inverse else Sn, xr, False)):
                    A_, B_ = (x, t) if data_is_A else (t, x)
                    a(f'v_mfma_f32_32x32x16_bf16 {d}, {A_}, {B_}, {"0" if f0 else d}')
        a('s_nop 15')
    def cmul(blk, q, C, Sg, plus):
        R_, I_ = AR+16*blk+4*q, AI+16*blk+4*q
        ng = ' neg_lo:[0,1,0] neg_hi:[0,1,0]'
        for h in range(2):
            a(f'v_pk_mul_f32 {v(TM+2*h,2)}, {v(R_+2*h,2)}, {v(C+2*h,2)}\nv_pk_mul_f32 {v(TM+4+2*h,2)}, {v(I_+2*h,2)}, {v(C+2*h,2)}')
        for h in range(2):
            a(f'v_pk_fma_f32 {v(TM+2*h,2)}, {v(I_+2*h,2)}, {v(Sg+2*h,2)}, {v(TM+2*h,2)}{ng if plus else ""}')
            a(f'v_pk_fma_f32 {v(TM+4+2*h,2)}, {v(R_+2*h,2)}, {v(Sg+2*h,2)}, {v(TM+4+2*h,2)}{"" if plus else ng}')
        for h in range(2):
            a(f'v_cvt_pk_bf16_f32 v{OPR+8*blk+2*q+h}, v{TM+2*h}, v{TM+2*h+1}\nv_cvt_pk_bf16_f32 v{OPI+8*blk+2*q+h}, v{TM+4+2*h}, v{TM+5+2*h}')
    def twiddle(base, plus):
        def rd(i):
            st = TF + 8*(i & 1)
            a(f'ds_read_b128 {v(st,4)}, v{vL16} offset:{base+i*2048}\nds_read_b128 {v(st+4,4)}, v{vL16} offset:{base+i*2048+1024}')
        rd(0)
        for i in range(8):
            if i < 7: rd(i+1); a('s_waitcnt lgkmcnt(2)')
            else: a('s_waitcnt lgkmcnt(0)')
            st = TF + 8*(i & 1)
            cmul(i >> 2, i & 3, st, st+4, plus)
    g32 = [(ks, [(blk, 2*blk+ks, ks == 0) for blk in range(2)]) for ks in range(2)]
    g64 = [(4*blk+ks, [(blk, ks, ks == 0)]) for blk in range(2) for ks in range(4)]
    dft(g32, F_W32, 2048, False, True)
    twiddle(F_TW1, False)
    dft(g64, F_W64, 8192, False, False)
    a('s_waitcnt vmcnt(0)')
    for i in range(8):
        for b in range(4):
            a(f'v_lshlrev_b32 v{TF+b}, 16, v{FL+4*i+b}\nv_and_b32 v{TF+4+b}, 0xffff0000, v{FL+4*i+b}')
        cmul(i >> 2, i & 3, TF, TF+4, True)
    dft(g64, F_W64, 8192, True, True)
    twiddle(F_TW2, True)
    dft(g32, F_W32, 2048, True, False)
    a(f's_cmp_eq_u32 s{sP}, 0\ns_cbranch_scc1 {tag}_P2')
    for q in range(32): a(f'v_mov_b32 v{SV+q}, v{AR+q}')
    a(f's_mov_b32 s{sP}, 0\ns_branch {tag}_PASS\n{tag}_P2:')
    a(f's_cmp_lg_u32 s{sF}, 0\ns_cbranch_scc1 {tag}_P3')
    for q in range(32): a(f'v_mov_b32 v{AI+q}, v{SV+q}')
    a(f'{tag}_P3:\ns_barrier')
    for blk in range(2):
        for i in range(16):
            a(f'v_cvt_pk_bf16_f32 v{FL+16*blk+i}, v{AR+16*blk+i}, v{AI+16*blk+i}')
            a(f'ds_write_b32 v{vXW}, v{FL+16*blk+i} offset:{(8*(i>>2)+(i&3))*1024+blk*512}')
            if i % 8 == 7: a('s_waitcnt lgkmcnt(4)')
    a(f'''v_add_u32 v{vT}, s{sU2}, v{vL16}
    s_lshl_b32 s89, s{sTK}, 16
    s_lshl_b32 s90, s{sWv}, 13
    s_add_u32 s89, s89, s90
    s_add_u32 s89, s89, {Z_BASE}
    s_add_u32 s90, s89, 4096
    s_waitcnt lgkmcnt(0)
    s_barrier''')
    for i in range(8): a(f'ds_read_b128 {v(AR+4*i,4)}, v{vT} offset:{i*1024}')
    for i in range(8):
        a(f's_waitcnt lgkmcnt({7-i})\nbuffer_store_dwordx4 {v(AR+4*i,4)}, v{vL16}, {W}, s{89+(i>>2)} offen offset:{(i&3)*1024}{stflav}')

sFL, sK0, sNO, sSL, sNP = 92, 93, 94, 95, 91
PT = 65536
def pack4(a, p, x, y):
    a(f'v_cvt_pk_bf16_f32 v{p}, v{x}, v{x+1}\nv_cvt_pk_bf16_f32 v{p+2}, v{y}, v{y+1}\nv_cvt_pk_bf16_f32 v{p+1}, v{x+2}, v{x+3}\nv_cvt_pk_bf16_f32 v{p+3}, v{y+2}, v{y+3}')

def gen_gemm2(a, tag, c, done, ldflav='', with_z=True):
    g = G; T = g.vT; MT, NT = c.MT, c.NT; acc = c.acc
    for i in range(4): a(f's_mov_b32 s{g.XS+i}, s{WS+i}')
    if with_z:
        a(f's_bitcmp1_b32 s{sFL}, 0\ns_cbranch_scc0 {tag}_NOZ')
        for i in range(4): a(f's_mov_b32 s{g.WSR+i}, s{WS+i}')
        a(f"""s_mul_i32 s{g.sXo}, s{sRB}, {c.BM*16}
        s_add_u32 s{g.sXo}, s{g.sXo}, {Z_BASE}
        s_mul_i32 s{g.sWo}, s{sCB}, {2*c.BN}
        s_add_u32 s{g.sWo}, s{g.sWo}, {FI_BASE}""")
        gemm_setup(a, c, 'chunk', 32768, 2048)
        a(f"""s_mul_i32 s{sU0}, s{sRB}, {c.BM*4}
        s_mul_i32 s{sU1}, s{g.sA}, {MT*64}
        s_add_u32 s{sU1}, s{sU1}, s{sU0}
        s_add_u32 s{sU1}, s{sU1}, {G_BASE+8192}
        v_and_b32 v3, 15, v0
        v_lshlrev_b32 v3, 2, v3""")
        for mt in range(MT): a(f'buffer_load_dword v{20+mt}, v3, {W}, s{sU1} offen offset:{mt*64}{ldflav}')
        gemm_loop(a, tag+'_Z', c, 'chunk', True, 16, (512//c.BM)*32768, 8*32768, 8*c.RPI*2048, 64*2048, ldflav=ldflav)
        for mt in range(MT):
            for nt in range(NT):
                for q in range(4): a(f'v_mul_f32 v{acc(mt,nt)+q}, v{20+mt}, v{acc(mt,nt)+q}')
        a(f's_branch {tag}_EP\n{tag}_NOZ:')
    a(f"""s_load_dwordx2 s[4:5], s[0:1], 40
    s_mul_i32 s{g.sXo}, s{sRB}, {c.BM*8192}
    s_lshl_b32 s{sU1}, s{sK0}, 11
    s_add_u32 s{g.sXo}, s{g.sXo}, s{sU1}
    s_add_u32 s{g.sXo}, s{g.sXo}, {O_BASE}
    s_mul_i32 s{g.sWo}, s{sCB}, {2*c.BN}
    s_lshl_b32 s{sU1}, s{sK0}, 17
    s_add_u32 s{g.sWo}, s{g.sWo}, s{sU1}
    s_waitcnt lgkmcnt(0)""")
    srd(a, g.WSR, 4, 8*MB)
    gemm_setup(a, c, 'frag', 131072, 2048)
    gemm_loop(a, tag+'_O', c, 'frag', True, f's{sNO}', 4*131072, 2048, 8*c.RPI*2048, 64*2048, ldflav=ldflav)
    a(f'{tag}_EP:')
    a(f's_and_b32 s{sU0}, s{g.sB}, 1\ns_lshl_b32 s{sU0}, s{sU0}, 13\ns_add_u32 s{sU0}, s{sU0}, s{sSL}')
    if c.WN == 4: a(f's_lshr_b32 s{sU1}, s{g.sB}, 1\ns_mul_i32 s{sU1}, s{sU1}, s{sNP}\ns_lshl_b32 s{sU1}, s{sU1}, 16\ns_add_u32 s{sU0}, s{sU0}, s{sU1}')
    if MT >= 4: a(f's_mul_i32 s{sU1}, s{g.sA}, {MT//4*16384}\ns_add_u32 s{sU0}, s{sU0}, s{sU1}')
    else:
        a(f"""s_and_b32 s{sU1}, s{sRB}, 1
        s_lshl_b32 s{sU1}, s{sU1}, 15
        s_add_u32 s{sU0}, s{sU0}, s{sU1}
        s_lshr_b32 s{sU1}, s{g.sA}, 1
        s_lshl_b32 s{sU1}, s{sU1}, 14
        s_add_u32 s{sU0}, s{sU0}, s{sU1}
        s_and_b32 s{sU1}, s{g.sA}, 1
        s_lshl_b32 s{sU1}, s{sU1}, 12
        s_add_u32 s{sU0}, s{sU0}, s{sU1}""")
    a(f'v_lshlrev_b32 v{T}, 4, v0')
    n = 0
    for mt in range(MT):
        for p_ in range(2):
            p = g.FR + 4 * (n % 8); n += 1
            pack4(a, p, acc(mt, 2*p_), acc(mt, 2*p_+1))
            a(f'buffer_store_dwordx4 {v(p,4)}, v{T}, {W}, s{sU0} offen offset:{(mt&1)*2048 + p_*1024} sc1')
        if mt & 1: a(f's_add_u32 s{sU0}, s{sU0}, {4096 if mt & 3 == 1 else 16384 - 4096}')
    a(f's_branch {done}')

def gen_reduce(a, tag, done, maxparts=17):
    a(f"""s_load_dwordx2 s[6:7], s[0:1], 88
    v_lshlrev_b32 v1, 4, v0
    s_add_u32 s{sK0}, s{sK0}, s{sWv}
    v_lshrrev_b32 v3, 2, v0
    v_lshlrev_b32 v2, 11, v3
    v_and_b32 v4, 3, v0
    v_lshl_add_u32 v2, v4, 4, v2
    v_lshlrev_b32 v3, 2, v3
    v_and_b32 v4, 1, v0
    v_lshl_add_u32 v3, v4, 7, v3
    v_and_b32 v4, 2, v0
    v_lshl_add_u32 v3, v4, 5, v3
    s_waitcnt lgkmcnt(0)""")
    srd(a, TS, 6, 4*MB)
    B = 64; A_ = 16
    a(f'{tag}_L:\ns_lshl_b32 s{sU0}, s{sK0}, 10\ns_add_u32 s{sU0}, s{sU0}, s{sSL}')
    for p in range(maxparts):
        if p >= 2: a(f's_cmp_le_u32 s{sNP}, {p}\ns_cbranch_scc1 {tag}_LD')
        a(f'buffer_load_dwordx4 {v(B+4*p,4)}, v1, {W}, s{sU0} offen sc1\ns_add_u32 s{sU0}, s{sU0}, {PT}')
    a(f"""{tag}_LD:
    s_lshl_b32 s{sU0}, s{sRB}, 19
    s_lshr_b32 s{sU1}, s{sK0}, 4
    s_lshl_b32 s{sU1}, s{sU1}, 17
    s_add_u32 s{sU0}, s{sU0}, s{sU1}
    s_and_b32 s{sU1}, s{sK0}, 6
    s_lshl_b32 s{sU1}, s{sU1}, 14
    s_add_u32 s{sU0}, s{sU0}, s{sU1}
    s_lshl_b32 s{sU1}, s{sCB}, 8
    s_add_u32 s{sU0}, s{sU0}, s{sU1}
    s_and_b32 s{sU1}, s{sK0}, 8
    s_lshl_b32 s{sU1}, s{sU1}, 4
    s_add_u32 s{sU0}, s{sU0}, s{sU1}
    s_and_b32 s{sU1}, s{sK0}, 1
    s_lshl_b32 s{sU1}, s{sU1}, 6
    s_add_u32 s{sU0}, s{sU0}, s{sU1}
    s_waitcnt vmcnt(0)""")
    for p in range(maxparts):
        if p >= 2: a(f's_cmp_le_u32 s{sNP}, {p}\ns_cbranch_scc1 {tag}_AD')
        d = A_ if p == 0 else A_ + 8
        for q in range(4): a(f'v_lshlrev_b32 v{d+2*q}, 16, v{B+4*p+q}\nv_and_b32 v{d+2*q+1}, 0xffff0000, v{B+4*p+q}')
        if p:
            for q in range(0, 8, 2): a(f'v_pk_add_f32 {v(A_+q,2)}, {v(A_+q,2)}, {v(A_+8+q,2)}')
    a(f'{tag}_AD:')
    pack4(a, 8, A_, A_+4)
    a('v_permlane16_swap_b32 v8, v10\ns_nop 0\nv_permlane16_swap_b32 v9, v11')
    for q in range(4): a(f'ds_bpermute_b32 v{12+q}, v3, v{8+q}')
    a(f"""s_waitcnt lgkmcnt(0)
    buffer_store_dwordx4 v[12:15], v2, s[{TS}:{TS+3}], s{sU0} offen
    s_add_u32 s{sK0}, s{sK0}, 8
    s_sub_u32 s{sNO}, s{sNO}, 1
    s_cmp_lg_u32 s{sNO}, 0
    s_cbranch_scc1 {tag}_L
    s_branch {done}""")
```

```python
from asmlib import *
from layout import *
import math, struct

def f2u(f): return struct.unpack('<I', struct.pack('<f', f))[0]

WS = 8; TS = 12; DBG = 16
sRHO, sX, sC, sGQ, sW, sSTEP, sBUD = 20, 21, 22, 23, 24, 25, 26
sO1, sO2, sO3, sO4, sO5, sO6 = 27, 28, 29, 30, 32, 23
sT0, sKV, sKVM, sP0, sP1, sT1, sT2 = 33, 34, 35, 36, 37, 38, 39
sSC, sSELLO, sSELHI, sI16 = 40, 31, 42, 43
sWSB = 44
sWARM = 46
sJ = 48
sPW = 49
sLD = 50
sMODE = 51
sST = 56

LDS_P = 0
LDS_W = 12288
LDS_F = 16384
LDS_V = 20480

def srd(a, d, base, nbytes):
    a(f's_mov_b32 s{d}, s{base}\ns_and_b32 s{d+1}, s{base+1}, 0xffff\ns_mov_b32 s{d+2}, {nbytes}\ns_mov_b32 s{d+3}, 0x20000')

def slot(a, dst, add, shift, base):
    if add: a(f's_add_u32 s{dst}, s{sSTEP}, {add}\ns_and_b32 s{dst}, s{dst}, 3')
    else: a(f's_and_b32 s{dst}, s{sSTEP}, 3')
    a(f's_lshl_b32 s{dst}, s{dst}, {shift}\ns_add_u32 s{dst}, s{dst}, s{base}')
SH_B1, SH_B2, SH_A = 18, 17, 18
B2_OFF, O_OFF = 1024*1024, 1536*1024

def budget(a, out):
    a(f's_sub_u32 s{sBUD}, s{sBUD}, 1\ns_cbranch_scc1 {out}')

def make_sel(a, SEL, vE, t0, t1):
    a(f'''v_and_b32 v{t0}, 1, v{vE}
    v_lshlrev_b32 v{t0}, 4, v{t0}
    v_mov_b32 v{t1}, 0x3f80
    v_lshlrev_b32 v{t0}, v{t0}, v{t1}
    v_lshrrev_b32 v{t1}, 1, v{vE}''')
    for r in range(4):
        a(f'v_cmp_eq_u32 vcc, {r}, v{t1}\ns_nop 1\nv_cndmask_b32 v{SEL+r}, 0, v{t0}, vcc')

def gather_fsm(a, tag, n, load, regs, consume, vA, vB, done, on_fail, dup_nops=10, first_ts=None, last_ts=None, mult=1, vQ=None):
    name = lambda q: f'{tag}_S' + ''.join(map(str, q))
    emitted = set(); todo = []; fails = []; tramps = []
    def want(q):
        if q not in emitted and q not in todo: todo.append(q)
        return name(q)
    def quick(k):
        if mult == 1: return [f'v_cmp_eq_u32 vcc, -1, v{regs(k)+3}']
        return [f'v_max_u32 v{vQ}, v{regs(k)+3}, v{regs(k)+7}', f'v_cmp_eq_u32 vcc, -1, v{vQ}']
    def test(q):
        return [f's_waitcnt vmcnt({mult*(len(q)-1)})'] + quick(q[0])
    def head(q):
        a(f'{name(q)}:'); a('\n'.join(test(q))); a(f's_cbranch_vccnz {name(q)}_F')
    def accs(k, first, A, B):
        out = []
        for j in range(mult):
            r = regs(k) + 4*j
            if first and j == 0: out.append(f'v_max_u32 v{A}, v{r}, v{r+1}\nv_max_u32 v{B}, v{r+2}, v{r+3}')
            else: out.append(f'v_max3_u32 v{A}, v{A}, v{r}, v{r+1}\nv_max3_u32 v{B}, v{B}, v{r+2}, v{r+3}')
        return out
    def ok(q, fall):
        emitted.add(q); fails.append(q)
        k = q[0]; first = len(q) == n
        a(f'{name(q)}_OK:')
        if first and first_ts: first_ts()
        if len(q) == 1 and last_ts: last_ts()
        m = consume(k, first); ac = accs(k, first, vA, vB)
        rest_ = q[1:]
        if not rest_:
            for i, x in enumerate(m):
                a(x)
                if i < len(ac): a(ac[i])
            if not fall: a(f's_branch {done}')
            return
        want(rest_)
        a(m[0]); a('\n'.join(test(rest_))); a(m[1]); a(ac[0]); a(m[2])
        a(f's_cbranch_vccnz {name(q)}_T')
        tail = '\n'.join(m[3:] + ac[1:])
        a(tail)
        tramps.append((q, tail))
        if not fall: a(f's_branch {name(rest_)}_OK')
    q = tuple(range(n))
    head(q); main = []
    while q:
        ok(q, True); main.append(q); q = q[1:]
    def rest():
        for q in main[1:]:
            if len(q) > 1: head(q); a(f's_branch {name(q)}_OK')
        while fails or todo or tramps:
            while tramps:
                q, tail = tramps.pop(0)
                a(f'{name(q)}_T:'); a(tail); a(f's_branch {name(q[1:])}_F')
            while fails:
                q = fails.pop(0); k = q[0]
                a(f'{name(q)}_F:'); load(k); on_fail(n - len(q))
                if len(q) > 1:
                    a(f's_branch {want(q[1:] + q[:1])}')
                else:
                    for _ in range(3):
                        a(f's_nop {dup_nops}'); load(k)
                    a(f'{name(q)}_L:\ns_waitcnt vmcnt({3*mult})')
                    r = regs(k)
                    a(f'v_max3_u32 v{vQ}, v{r}, v{r+1}, v{r+2}')
                    for j in range(3, 4*mult - 1, 2): a(f'v_max3_u32 v{vQ}, v{vQ}, v{r+j}, v{r+j+1}')
                    a(f'v_max_u32 v{vQ}, v{vQ}, v{r+4*mult-1}\nv_cmp_eq_u32 vcc, -1, v{vQ}\ns_cbranch_vccz {name(q)}_OK')
                    load(k); on_fail(n)
                    a(f's_branch {name(q)}_L')
            if todo:
                q = todo.pop(0)
                if q not in emitted:
                    if len(q) > 1: head(q)
                    ok(q, False)
    return rest

def gen_rec(a, opt):
    DUAL = opt.get('intra', 'dual') == 'dual'
    LIN = ' sc1' if opt.get('intra') == 'sc1' else ''
    EXIT = opt['exit']
    MEGA = opt.get('mega', False)
    NEXT = opt.get('next', EXIT)
    NSTEP = opt.get('nstep', 64)
    TL = opt.get('timeline', False)
    W = f's[{WS}:{WS+3}]'
    NST = 16
    def get_pages(lbl, t):
        if not MEGA: return
        a(f'{lbl}:\nbuffer_load_dwordx2 v[{t}:{t+1}], off, s[{DBG}:{DBG+3}], 0 offset:72 sc1')
        budget(a, EXIT)
        a(f's_waitcnt vmcnt(0)\nv_cmp_eq_u32 vcc, 0, v{t}\ns_cbranch_vccnz {lbl}\nv_cmp_eq_u32 vcc, 0, v{t+1}\ns_cbranch_vccnz {lbl}')
        a(f'v_readfirstlane_b32 s{sP0}, v{t}\ns_nop 3\ns_sub_u32 s{sP0}, s{sP0}, 1\ns_xor_b32 s{sP1}, s{sP0}, {MSG1 + 8192}')
    def kv_wait(lbl, t):
        a(f's_mul_i32 s{sT2}, s{sX}, {KV_GS}\ns_add_u32 s{sT1}, s{sT1}, s{sT2}\ns_lshl_b32 s{sT1}, s{sT1}, 7\ns_add_u32 s{sT1}, s{sT1}, {CNT_BASE + C_KV*128}')
        a(f'{lbl}:\nbuffer_load_dword v{t}, off, {W}, s{sT1} sc1')
        budget(a, EXIT)
        a(f's_waitcnt vmcnt(0)\nv_cmp_gt_u32 vcc, {KV_TARGET}, v{t}\ns_cbranch_vccz {lbl}_OK\ns_sleep 2\ns_branch {lbl}\n{lbl}_OK:')
    def ts(i):
        if TL: a(f's_memtime s[{sST+2*i}:{sST+2*i+1}]')
    def rt(i):
        if TL: a(f's_memrealtime s[4:5]\ns_waitcnt lgkmcnt(0)\ns_mov_b32 s{sST+2*NST+8+i}, s4')
    def cnt(i):
        if TL: a(f's_add_u32 s{sST+2*NST+i}, s{sST+2*NST+i}, 1')
    def tl_dump(lbl, tmp):
        if TL:
            a(f's_cmp_lg_u32 s{sSTEP}, {TL+1}\ns_cbranch_scc1 {lbl}')
            dump(0, NST, 2, 0, tmp)
            a(f'{lbl}:')
    def dump(first, n, stride, slot0, tmp):
        a(f's_waitcnt lgkmcnt(0)\ns_lshl_b32 s{sT0}, s{sRHO}, 3\ns_add_u32 s{sT0}, s{sT0}, s{sW}\ns_lshl_b32 s{sT0}, s{sT0}, 7\ns_add_u32 s{sT0}, s{sT0}, {STAMP_BASE}')
        for i in range(n):
            a(f'v_mov_b32 v{tmp}, s{sST+first+stride*i}\nbuffer_store_dword v{tmp}, off, {W}, s{sT0} offset:{4*(slot0+i)}')
        a('s_waitcnt vmcnt(0)')
    def kvm_half(r):
        return f's_lshr_b32 s{sT0}, s{r}, 8\ns_xor_b32 s{sT0}, s{sT0}, s{sP0}\ns_and_b32 s{sT0}, s{sT0}, 0x2000\ns_add_u32 s{sT0}, s{sT0}, s{r}\n'
    def sleep(key, dflt=0):
        d = opt.get(key, dflt)
        if d: a(f's_sleep {d}')
    def nops(key, dflt=0):
        d = opt.get(key, dflt) if isinstance(key, str) else key
        while d > 0:
            a(f's_nop {min(d,16)-1}'); d -= 16
    vIDX, vGR, vLW, vLR, vCH, vT = 1, 2, 3, 4, 5, 6
    SEL = 16; RDD = 20; AM = 24; ACC = 40
    vI, vG, vT2, vIP = AM+4, AM+5, AM+6, AM+7
    a(f"""v_lshrrev_b32 v1, 6, v0
    v_and_b32 v0, 63, v0
    s_lshr_b32 s{sX}, s{sRHO}, 5
    v_readfirstlane_b32 s{sW}, v1
    s_and_b32 s{sC}, s{sRHO}, 31
    s_mov_b32 s{sSTEP}, 0
    s_mov_b32 s{sBUD}, {opt.get('budget', 2000000)}
    s_mov_b32 s{sSC}, {f2u(128**-0.5 * math.log2(math.e))}
    s_mov_b32 s{sSC+1}, {f2u(-128**-0.5 * math.log2(math.e))}
    s_mov_b32 s{sSELLO}, 0x05040100
    s_mov_b32 s{sSELHI}, 0x07060302
    s_and_b32 s{sPW}, s{sW}, 3
    v_and_b32 v{vI}, 15, v0
    v_lshrrev_b32 v{vG}, 4, v0
    v_mov_b32 v{vIDX}, 0x4444
    v_mov_b32 v{vT}, 0xeeee
    v_cmp_lt_u32 vcc, 7, v{vI}
    s_nop 1
    v_cndmask_b32 v{vIDX}, v{vIDX}, v{vT}, vcc""")
    if TL:
        for i in range(2*NST+12): a(f's_mov_b32 s{sST+i}, 0')
    a(f"""v_and_b32 v{vT}, 1, v{vG}
    v_lshlrev_b32 v{vT}, 2, v{vT}
    v_lshrrev_b32 v{vT2}, 1, v{vG}
    v_lshl_add_u32 v{vT}, v{vT2}, 4, v{vT}
    s_lshl_b32 s{sT0}, s{sPW}, 8
    v_add_u32 v{vT}, s{sT0}, v{vT}""")
    def load_w(reg, stride, nk=4, fl=''):
        for k in range(nk):
            for b in range(8):
                row = 64*k + 32*(b>>2) + 8*(b&1) + 2*((b>>1)&1)
                a(f's_mov_b32 s{sT0}, {row*stride}\ns_mov_b32 s{sT1}, {(row+1)*stride}')
                a(f'buffer_load_dword v{reg(0,k)+b}, v{vT}, s[{TS}:{TS+3}], s{sT0} offen{fl}')
                a(f'buffer_load_dword v{reg(1,k)+b}, v{vT}, s[{TS}:{TS+3}], s{sT1} offen{fl}')
            a(f's_waitcnt vmcnt({opt.get("wdepth", 44)})')
    def perm_w(reg, nk=4):
        for k in range(nk):
            for b in range(8):
                x0, x1 = reg(0,k)+b, reg(1,k)+b
                a(f'v_perm_b32 v{vT}, v{x1}, v{x0}, s{sSELLO}\nv_perm_b32 v{x1}, v{x1}, v{x0}, s{sSELHI}\nv_mov_b32 v{x0}, v{vT}')
    def common_addrs(goff):
        a(f"""s_lshl_b32 s{sT0}, s{sX}, 1
        s_lshr_b32 s{sT1}, s{sPW}, 1
        s_add_u32 s{sT0}, s{sT0}, s{sT1}
        s_lshl_b32 s{sT0}, s{sT0}, 14
        s_and_b32 s{sT1}, s{sPW}, 1
        s_lshl_b32 s{sT1}, s{sT1}, 12
        s_add_u32 s{sT0}, s{sT0}, s{sT1}
        s_add_u32 s{sT0}, s{sT0}, {goff}
        v_lshl_add_u32 v{vGR}, v0, 4, s{sT0}""")
        a(f"""v_bfe_u32 v{vIP}, v0, 1, 2
        v_lshlrev_b32 v{vIP}, 2, v{vIP}
        v_bfe_u32 v{vT2}, v0, 3, 1
        v_lshl_add_u32 v{vIP}, v{vT2}, 1, v{vIP}
        v_and_b32 v{vT2}, 1, v0
        v_add_u32 v{vIP}, v{vIP}, v{vT2}""")
        a(f"""v_and_b32 v{vT2}, 1, v{vG}
        v_lshlrev_b32 v{vLW}, 11, v{vT2}
        v_lshrrev_b32 v{vT2}, 1, v{vG}
        v_lshl_add_u32 v{vLW}, v{vT2}, 8, v{vLW}
        v_lshl_add_u32 v{vLW}, v{vIP}, 4, v{vLW}
        s_lshl_b32 s{sT0}, s{sPW}, 9
        v_add_u32 v{vLW}, s{sT0}, v{vLW}""")
        a(f"""v_lshrrev_b32 v{vT2}, 2, v{vI}
        v_lshlrev_b32 v{vT2}, 1, v{vT2}
        v_and_b32 v{vCH}, 1, v{vI}
        v_add_u32 v{vT2}, v{vT2}, v{vCH}
        v_and_b32 v{vCH}, 2, v{vI}
        v_lshl_add_u32 v{vT2}, v{vCH}, 2, v{vT2}""")
        make_sel(a, SEL, vT2, vCH, RDD)
        a(f"""s_lshr_b32 s{sO1}, s{sRHO}, 4
        s_lshl_b32 s{sO1}, s{sO1}, 14
        s_and_b32 s{sT1}, s{sRHO}, 15
        s_lshl_b32 s{sT1}, s{sT1}, 9
        s_add_u32 s{sO1}, s{sO1}, s{sT1}
        s_lshr_b32 s{sO2}, s{sRHO}, 3
        s_lshl_b32 s{sO2}, s{sO2}, 14
        s_and_b32 s{sT1}, s{sRHO}, 4
        s_lshl_b32 s{sT1}, s{sT1}, 10
        s_add_u32 s{sO2}, s{sO2}, s{sT1}""")
    getmode = lambda t: a(f'v_mov_b32 v{t}, {LDS_F}\nds_read_b32 v{t}, v{t}\ns_waitcnt lgkmcnt(0)\nv_readfirstlane_b32 s{sMODE}, v{t}\ns_nop 3')
    def rd2(dst, off):
        for q in range(2): a(f'ds_read_b128 {v(dst+4*q,4)}, v{vLR} offset:{off + q*1024}')
    def red2(src):
        a(f's_waitcnt lgkmcnt(1)\nv_mfma_f32_16x16x32_bf16 {v(RDD,4)}, {v(SEL,4)}, {v(src,4)}, 0')
        a(f's_waitcnt lgkmcnt(0)\nv_mfma_f32_16x16x32_bf16 {v(RDD,4)}, {v(SEL,4)}, {v(src+4,4)}, {v(RDD,4)}')
    a(f's_cmp_lt_u32 s{sW}, 4\ns_cbranch_scc1 R_Q')

    a.c('================ q/k/v projection waves ================')
    rt(0)
    vAT, vARM, vFR, vTK = 7, 8, 9, 10
    vSEN = 12; W1 = 64
    acc = lambda m, t: ACC + (m*2+t)*4
    w1 = lambda m, t, k: W1 + (k*6 + m*2 + t)*8
    a(f"""v_lshlrev_b32 v{vT}, 13, v{vT}
    v_lshl_add_u32 v{vT}, v{vI}, {3 if opt.get('wtest') else 2}, v{vT}
    s_lshl_b32 s{sT1}, s{sRHO}, 6
    s_and_b32 s{sT1}, s{sT1}, {-128 if opt.get('wtest') else -1}
    v_add_u32 v{vT}, s{sT1}, v{vT}""")
    for m in range(3):
        a(f's_load_dwordx2 s[4:5], s[0:1], {16+8*m}\ns_waitcnt lgkmcnt(0)')
        srd(a, TS, 4, 8*MB)
        load_w(lambda t, k: w1(m, t, k), 8192, 4, ' nt' if 'qkv'[m] in opt.get('wnt', '') else '')
    for r in range(4): a(f'v_mov_b32 v{vSEN+r}, -1')
    common_addrs(B2_OFF)
    a(f"""s_and_b32 s{sT1}, s{sRHO}, 3
    s_lshl_b32 s{sT1}, s{sT1}, 10
    s_add_u32 s{sO2}, s{sO2}, s{sT1}
    s_lshl_b32 s{sT2}, s{sPW}, 6
    s_add_u32 s{sT2}, s{sT2}, s{sO2}
    v_lshl_add_u32 v{vAT}, v{vG}, 4, s{sT2}
    v_lshrrev_b32 v{vT2}, 2, v{vI}
    v_lshl_add_u32 v{vAT}, v{vT2}, 8, v{vAT}
    v_and_b32 v{vT2}, 3, v{vI}
    v_lshl_add_u32 v{vAT}, v{vT2}, 2, v{vAT}
    s_lshl_b32 s{sT0}, s{sPW}, 11
    v_lshl_add_u32 v{vLR}, v0, 4, s{sT0}""")
    a(f"""v_lshl_add_u32 v{vARM}, v0, 4, s{sO2}
    s_cmp_eq_u32 s{sPW}, 1
    s_cbranch_scc0 RP_A2
    v_and_b32 v{vT2}, 31, v0
    v_lshl_add_u32 v{vARM}, v{vT2}, 4, s{sO1}
    v_lshrrev_b32 v{vT2}, 5, v0
    v_lshl_add_u32 v{vARM}, v{vT2}, 19, v{vARM}
    v_add_u32 v{vARM}, {B2_OFF}, v{vARM}
RP_A2:""")
    assert O_OFF - B2_OFF == 1 << 19
    SEN = v(vSEN, 4)
    get_pages('RP_PG', AM)
    a(f's_cmp_ge_u32 s{sPW}, 2\ns_cbranch_scc1 RP_I4\ns_cmp_eq_u32 s{sPW}, 1\ns_cbranch_scc1 RP_I2')
    for sl in range(4):
        a(f's_add_u32 s{sT0}, s{sP1}, {sl << SH_A}\nbuffer_store_dwordx4 {SEN}, v{vARM}, {W}, s{sT0} offen sc1')
    a('s_branch RP_I4\nRP_I2:')
    for sl in range(1, 4):
        a(f's_add_u32 s{sT0}, s{sP0}, {sl << SH_B2}\nbuffer_store_dwordx4 {SEN}, v{vARM}, {W}, s{sT0} offen sc1')
    a(f"""s_load_dwordx2 s[4:5], s[0:1], 8
    v_and_b32 v{vT2}, 7, v0
    v_lshlrev_b32 v{vT2}, 11, v{vT2}
    v_bfe_u32 v{vCH}, v0, 3, 2
    v_lshl_add_u32 v{vT2}, v{vCH}, 4, v{vT2}
    s_lshl_b32 s{sT0}, s{sC}, 6
    v_cmp_gt_u32 vcc, 32, v0
    s_waitcnt lgkmcnt(0)""")
    srd(a, TS, 4, 16384)
    a(f'buffer_load_dwordx4 {v(AM,4)}, v{vT2}, s[{TS}:{TS+3}], s{sT0} offen\ns_waitcnt vmcnt(0)')
    for r in range(4): a(f'v_min_u32 v{AM+r}, -2, v{AM+r}\nv_cndmask_b32 v{AM+r}, -1, v{AM+r}, vcc')
    a(f'buffer_store_dwordx4 {v(AM,4)}, v{vARM}, {W}, s{sP0} offen sc1')
    a('RP_I4:\ns_waitcnt vmcnt(0)')
    rt(1)
    for m in range(3): perm_w(lambda t, k: w1(m, t, k))
    WA = opt.get('warm_ahead', 2)
    a(f"""s_lshl_b32 s{sT0}, s{sRHO}, 12
    s_lshl_b32 s{sT1}, s{sPW}, 10
    s_add_u32 s{sT0}, s{sT0}, s{sT1}
    s_add_u32 s{sT0}, s{sT0}, {KV_BASE + WA*32*16384}
    s_add_u32 s{sWARM}, s{sWSB}, s{sT0}
    s_addc_u32 s{sWARM+1}, s{sWSB+1}, 0
    v_mov_b32 v{vFR}, 0
    s_lshr_b32 s{sKVM}, s{sRHO}, 3
    s_lshl_b32 s{sKVM}, s{sKVM}, 14
    s_and_b32 s{sT1}, s{sRHO}, 4
    s_mul_i32 s{sT1}, s{sT1}, 3072
    s_add_u32 s{sKVM}, s{sKVM}, s{sT1}
    s_add_u32 s{sKVM}, s{sKVM}, {KVM_BASE}
    s_barrier""")
    a(f's_cmp_lg_u32 s{sPW}, 0\ns_cbranch_scc1 RP_INITDONE')
    a(f"""v_mov_b32 v{vT}, 1
    s_mov_b64 exec, 1
    buffer_atomic_add v{vT}, off, s[{DBG}:{DBG+3}], 0 offset:64 sc1
    s_mov_b64 exec, -1
RP_INITW:
    buffer_load_dwordx2 v[{AM}:{AM+1}], off, s[{DBG}:{DBG+3}], 0 offset:64 sc1""")
    budget(a, EXIT)
    a(f"""s_waitcnt vmcnt(0)
    v_cmp_gt_u32 vcc, 128, v{AM}
    s_cbranch_vccnz RP_INITW
    v_mov_b32 v{vCH}, {LDS_F}
    ds_write_b32 v{vCH}, v{AM+1}
    s_waitcnt lgkmcnt(0)
RP_INITDONE:""")
    sB2C, sAC, sARM = sO1, sO2, sO3
    def p_slots():
        slot(a, sB2C, 0, SH_B2, sP0); slot(a, sAC, 0, SH_A, sP1)
    p_slots()
    a('s_barrier')
    getmode(vT)
    rt(2)
    def p_loop(Z, IN):
        a(f'RP{Z}_LOOP:')
        ts(0)
        nops('b2_nops', 16)
        a(f'RP{Z}_RETRY:')
        ldg = lambda k: a(f'buffer_load_dwordx4 {v(AM+4*k,4)}, v{vGR}, {W}, s{sB2C} offen offset:{k*1024} sc1')
        sms = lambda m, t, k: f'v_smfmac_f32_16x16x64_bf16 {v(acc(m,t),4)}, {v(AM+4*k,4)}, {v(w1(m,t,k),8)}, v{vIDX}'
        sm = lambda m, t, k: a(sms(m, t, k))
        for k in range(4):
            ldg(k)
            if k < 3:
                for r in range(8): a(f'v_mov_b32 v{ACC+8*k+r}, 0')
                nops('gap', 6)
        def fail(i): cnt(i); budget(a, EXIT)
        rest = gather_fsm(a, f'RPG{Z}', 4, ldg, lambda k: AM+4*k, lambda k, f: [sms(0,0,k), sms(0,1,k), sms(1,0,k), sms(1,1,k)],
                          vCH, vT, f'RPG{Z}_DONE', fail, first_ts=lambda: ts(1), last_ts=lambda: ts(2), vQ=11)
        a(f'RPG{Z}_DONE:\nv_max_u32 v{vCH}, v{vCH}, v{vT}\nv_cmp_eq_u32 vcc, -1, v{vCH}')
        def post(m, pk):
            for r in range(4): a(f'v_cvt_pk_bf16_f32 v{pk+r}, v{acc(m,0)+r}, v{acc(m,1)+r}')
            a(f'ds_write_b128 v{vLW}, {v(pk,4)} offset:{LDS_P + m*4096}')
        ts(3)
        post(0, acc(0,0))
        a(f's_cbranch_vccnz RP{Z}_RX')
        sm(2,0,0)
        post(1, acc(1,0))
        ts(4)
        sm(2,1,0); sm(2,0,1); sm(2,1,1)
        a('s_waitcnt lgkmcnt(0)')
        ts(5)
        a('s_barrier')
        rd2(ACC, LDS_P)
        ts(6)
        red2(ACC)
        sm(2,0,2); sm(2,1,2)
        a('s_nop 1')
        a(f'v_cvt_pk_bf16_f32 v{vTK}, v{RDD}, v{RDD+1}\nv_min_u32 v{vTK}, -2, v{vTK}')
        a(f'buffer_store_dword v{vTK}, v{vAT}, {W}, s{sAC} offen{IN}')
        ts(7)
        sm(2,0,3); sm(2,1,3)
        a('s_nop 7')
        post(2, acc(1,0))
        a('s_waitcnt lgkmcnt(0)')
        a('s_barrier')
        ts(8)
        if TL: a(f's_mov_b32 m0, s{sSTEP}\nv_writelane_b32 v{vFR}, s{sST}, m0')
        slot(a, sARM, 3, SH_A, sP1); slot(a, sT0, 3, SH_B2, sP0)
        a(f's_cmp_eq_u32 s{sPW}, 1\ns_cselect_b32 s{sARM}, s{sT0}, s{sARM}')
        a(f's_add_u32 s{sSTEP}, s{sSTEP}, 1')
        p_slots()
        CPY = kvm_half(sKVM) + f'buffer_store_dword v{vTK}, v{vAT}, {W}, s{sT0} offen sc1\ns_add_u32 s{sKVM}, s{sKVM}, {32*UNIT}'
        a(f's_cmp_ge_u32 s{sSTEP}, {NSTEP}\ns_cbranch_scc1 RP{Z}_FIN')
        J2 = opt.get('junk', 1) == 2
        a('s_barrier')
        if J2: a('s_barrier\ns_barrier')
        a(f's_cmp_ge_u32 s{sPW}, 2\ns_cbranch_scc1 RP{Z}_NOARM')
        a(f'buffer_store_dwordx4 {SEN}, v{vARM}, {W}, s{sARM} offen{IN}\ns_branch RP{Z}_NOCP')
        a(f'RP{Z}_NOARM:')
        if not opt.get('nocopy'): a(CPY)
        a(f'RP{Z}_NOCP:')
        if opt.get('warm', False) or MEGA:
            a(f's_cmp_ge_u32 s{sSTEP}, {NSTEP-WA+1}\ns_cbranch_scc1 RP{Z}_NOWARM')
            if MEGA:
                a(f's_add_u32 s{sT1}, s{sSTEP}, {WA-1}\ns_and_b32 s{sT2}, s{sT1}, {KV_SEGS-1}\ns_cbranch_scc1 RP{Z}_KV_OK\ns_lshr_b32 s{sT1}, s{sT1}, {KV_SEGS.bit_length()-1}')
                kv_wait(f'RP{Z}_KV', vT)
            if opt.get('warm', False):
                for q in range(8):
                    a(f's_load_dword s{sJ}, s[{sWARM}:{sWARM+1}], {q*128}')
                a(f's_add_u32 s{sWARM}, s{sWARM}, {32*16384}\ns_addc_u32 s{sWARM+1}, s{sWARM+1}, 0')
        a(f'RP{Z}_NOWARM:')
        ts(9)
        a('s_barrier' if J2 else 's_barrier\ns_barrier\ns_barrier')
        tl_dump(f'RP{Z}_TL', vT)
        a(f's_branch RP{Z}_LOOP')
        a(f'RP{Z}_FIN:\ns_cmp_lt_u32 s{sPW}, 2\ns_cbranch_scc1 RP_END')
        a(CPY)
        a('s_waitcnt vmcnt(0)\ns_branch RP_END')
        a(f'RP{Z}_RX:'); budget(a, EXIT)
        a(f's_waitcnt vmcnt(0) lgkmcnt(0)\ns_nop 4\ns_branch RP{Z}_RETRY')
        rest()
    if DUAL:
        a(f's_cmp_lg_u32 s{sMODE}, 0\ns_cbranch_scc1 RPs_LOOP')
        p_loop('f', ''); p_loop('s', ' sc1')
    else: p_loop('', LIN)
    a('RP_END:')
    rt(3)
    if TL:
        a(f's_lshl_b32 s{sT0}, s{sRHO}, 2\ns_add_u32 s{sT0}, s{sT0}, s{sPW}\ns_lshl_b32 s{sT0}, s{sT0}, 8\ns_add_u32 s{sT0}, s{sT0}, {STAMP_BASE + 512*1024}')
        a(f'v_lshlrev_b32 v{vT}, 2, v0\nbuffer_store_dword v{vFR}, v{vT}, {W}, s{sT0} offen')
        dump(2*NST, 12, 1, 16, vT)
    a(f's_barrier\ns_branch {NEXT}')

    a.c('================ attention + Wo waves ================')
    a('R_Q:')
    vTR, vOW, vKV, vB1W, vB1R, vB2W, vM, vM2, vCP = 7, 8, 9, 10, 11, 12, 13, 14, 15
    WO = 128; wo = lambda t, k: WO + (k*2 + t)*8
    OG, BD, BO = 48, 80, 88
    T, S, KX, VX, VM, PX, PM, ONES, CM, OD, LD, OP = 48, 64, 128, 160, 100, 168, 172, 176, 180, 184, 192, 196
    SV, VR, VD = 128, 144, 160
    a(f"""s_add_u32 s{sT0}, s{sPW}, 1
    s_bitcmp1_b32 s{sT0}, 1
    s_cbranch_scc0 RQ_NW
    s_load_dwordx2 s[4:5], s[0:1], 40
    v_and_b32 v{vT}, 31, v{vT}
    v_lshlrev_b32 v{vT}, 11, v{vT}
    v_lshl_add_u32 v{vT}, v{vI}, {3 if opt.get('wtest') else 2}, v{vT}
    s_lshl_b32 s{sT0}, s{sX}, 21
    s_lshl_b32 s{sT1}, s{sC}, 6
    s_and_b32 s{sT1}, s{sT1}, {-128 if opt.get('wtest') else -1}
    s_add_u32 s{sT0}, s{sT0}, s{sT1}
    s_and_b32 s{sT1}, s{sPW}, 1
    s_lshl_b32 s{sT1}, s{sT1}, 20
    s_add_u32 s{sT0}, s{sT0}, s{sT1}
    v_add_u32 v{vT}, s{sT0}, v{vT}
    s_waitcnt lgkmcnt(0)""")
    srd(a, TS, 4, 8*MB)
    load_w(wo, 2048, 8, ' nt' if 'o' in opt.get('wnt', '') else '')
    a('RQ_NW:')
    common_addrs(O_OFF)
    a(f"""s_and_b32 s{sT2}, s{sPW}, 1
    s_lshl_b32 s{sT0}, s{sX}, 1
    s_add_u32 s{sT0}, s{sT0}, s{sT2}
    s_lshl_b32 s{sT0}, s{sT0}, 14
    s_add_u32 s{sT0}, s{sT0}, {O_OFF}
    v_lshl_add_u32 v{vGR}, v0, 4, s{sT0}
    s_lshl_b32 s{sT0}, s{sT2}, 11
    v_lshl_add_u32 v{vLR}, v0, 4, s{sT0}
    v_lshl_add_u32 v{vTR}, v0, 4, s{sO2}
    v_and_b32 v{vT2}, 7, v0
    v_lshl_add_u32 v{vOW}, v{vT2}, 4, s{sO1}
    v_lshl_add_u32 v{vOW}, v{vG}, 7, v{vOW}
    v_add_u32 v{vOW}, {O_OFF}, v{vOW}
    s_lshr_b32 s{sT0}, s{sRHO}, 2
    s_lshl_b32 s{sT0}, s{sT0}, 14
    v_lshl_add_u32 v{vKV}, v0, 4, s{sT0}""")
    a(f"""s_lshr_b32 s{sT0}, s{sC}, 1
    s_lshl_b32 s{sT0}, s{sT0}, 14
    s_and_b32 s{sT1}, s{sC}, 1
    s_lshl_b32 s{sT1}, s{sT1}, 12
    s_add_u32 s{sT0}, s{sT0}, s{sT1}
    v_add_u32 v{vB1R}, s{sT0}, v{vLR}
    v_mov_b32 v{vT2}, {WS_SIZE}
    v_cmp_eq_u32 vcc, s{sX}, v{vG}
    s_lshl_b32 s{sT1}, s{sX}, 8
    s_add_u32 s{sT0}, s{sT0}, s{sT1}
    v_cndmask_b32 v{vB1R}, v{vB1R}, v{vT2}, vcc
    v_and_b32 v{vT2}, 1, v{vG}
    v_lshlrev_b32 v{vLW}, 11, v{vT2}
    v_lshl_add_u32 v{vLW}, v{vI}, 4, v{vLW}
    v_lshrrev_b32 v{vT2}, 1, v{vG}
    v_lshl_add_u32 v{vLW}, v{vT2}, 3, v{vLW}
    s_lshl_b32 s{sT1}, s{sT2}, 10
    s_add_u32 s{sT0}, s{sT0}, s{sT1}
    v_add_u32 v{vB1W}, s{sT0}, v{vLW}
    s_lshl_b32 s{sT1}, s{sT2}, 8
    v_add_u32 v{vLW}, s{sT1}, v{vLW}""")
    for r in range(4): a(f'v_mov_b32 v{RDD+r}, 0')
    a(f'ds_write_b128 v{vLR}, {v(RDD,4)} offset:{LDS_W}\ns_waitcnt lgkmcnt(0)')
    a(f"""s_lshl_b32 s{sT0}, s{sT2}, 6
    s_add_u32 s{sT0}, s{sT0}, s{sO1}
    s_add_u32 s{sT0}, s{sT0}, {B2_OFF}
    v_lshl_add_u32 v{vB2W}, v{vG}, 4, s{sT0}
    v_lshrrev_b32 v{vT2}, 2, v{vI}
    v_lshl_add_u32 v{vB2W}, v{vT2}, 7, v{vB2W}
    v_and_b32 v{vT2}, 3, v{vI}
    v_lshl_add_u32 v{vB2W}, v{vT2}, 2, v{vB2W}""")
    a(f's_cmp_eq_u32 s{sPW}, 3\ns_cbranch_scc0 RQ_N3')
    a(f'v_lshlrev_b32 v{vTR}, 8, v{vG}\nv_lshl_add_u32 v{vTR}, v{vIP}, 4, v{vTR}')
    for rg in range(2):
        for t in range(2):
            a(f"""v_subrev_u32 v{vT2}, {8+4*rg}, v{vI}
            v_lshlrev_b32 v{vT2}, 1, v{vT2}
            v_add_u32 v{vT2}, {t}, v{vT2}""")
            make_sel(a, SV + (rg*2+t)*4, vT2, vCH, RDD)
    a(f'RQ_N3:\ns_cmp_eq_u32 s{sPW}, 0\ns_cbranch_scc0 RQ_N0')
    a(f'v_mov_b32 v{vT2}, 0xff800000\nv_cmp_gt_u32 vcc, 32, v0\ns_nop 1')
    for r in range(4): a(f'v_cndmask_b32 v{CM+r}, 0, v{vT2}, vcc')
    for r in range(4): a(f'v_mov_b32 v{ONES+r}, 0x3f803f80')
    a('RQ_N0:')
    get_pages('RQ_PG', AM)
    vS2 = 96
    a(f'v_mov_b32 v{vS2}, -1\nv_mov_b32 v{vS2+1}, -1')
    a(f's_add_u32 s{sT0}, s{sPW}, 1\ns_bitcmp1_b32 s{sT0}, 1\ns_cbranch_scc0 RQ_NW2')
    FRESH = opt.get('fresh', True)
    for sl in range(NSTEP-1 if FRESH else 4):
        if FRESH: a(f's_xor_b32 s{sT0}, s{sP0}, {((sl >> 3) & 1) << 13}\ns_add_u32 s{sT0}, s{sT0}, {B1F_BASE + (sl << SH_B1)}')
        else: a(f's_add_u32 s{sT0}, s{sP0}, {sl << SH_B1}')
        a(f'buffer_store_dwordx2 {v(vS2,2)}, v{vB1W}, {W}, s{sT0} offen sc1')
        if sl % 16 == 15: a('s_waitcnt vmcnt(40)')
    a('s_waitcnt vmcnt(0)')
    perm_w(wo, 8)
    a('RQ_NW2:')
    sK0, sK1, sV0, sJJ = 52, 53, 54, 55
    KVF = opt.get('kvflav', '')
    a(f"""s_and_b32 s{sJJ}, s{sRHO}, 3
    s_mov_b32 s{sK0}, {KV_BASE}
    s_mov_b32 s{sK1}, {KV_BASE + 4096}
    s_lshl_b32 s{sV0}, s{sJJ}, 11
    s_add_u32 s{sV0}, s{sV0}, {KV_BASE + 8192}
    s_mov_b32 s{sKVM}, {KVM_BASE}
    s_lshl_b32 s{sKV}, s{sJJ}, 9
    s_add_u32 s{sKV}, s{sKV}, {KVM_BASE + 4096 - 512}""")
    def prefetch():
        for i in range(8): a(f'buffer_load_dwordx4 {v(KX+4*i,4)}, v{vKV}, {W}, s{sK0+(i>>2)} offen offset:{(i&3)*1024}{KVF}')
        for i in range(2): a(f'buffer_load_dwordx4 {v(VX+4*i,4)}, v{vKV}, {W}, s{sV0} offen offset:{i*1024}{KVF}')
        for q in range(3): a(f's_add_u32 s{sK0+q}, s{sK0+q}, {32*16384}')
    a('s_barrier')
    a(f's_cmp_lg_u32 s{sPW}, 0\ns_cbranch_scc1 RQ_I1')
    if MEGA:
        a(f's_mov_b32 s{sT1}, 0'); kv_wait('RQ_KV0', vT)
    prefetch()
    a('RQ_I1:\ns_barrier')
    getmode(vT)
    sAC, sOC, sB1C, sB1A, sB2N = sO1, sO2, sO3, sO4, sO5
    def q_loop(Z, IN):
        def kvm_signal(lbl, final):
            if not MEGA: return
            if not final:
                a(f's_cmp_eq_u32 s{sSTEP}, 0\ns_cbranch_scc1 {lbl}\ns_and_b32 s{sT0}, s{sSTEP}, 31\ns_cmp_lg_u32 s{sT0}, s{sC}\ns_cbranch_scc1 {lbl}')
            a(f's_lshl_b32 s{sT0}, s{sX}, 6\ns_add_u32 s{sT0}, s{sT0}, s{sSTEP}\ns_lshl_b32 s{sT0}, s{sT0}, 7\ns_add_u32 s{sT0}, s{sT0}, {CNT_BASE + (C_KVM-1)*128}')
            a(f'v_mov_b32 v{vM2}, {1 if final else 32}\ns_mov_b64 exec, 1')
            if final:
                for i in (1, 0): a(f'buffer_atomic_add v{vM2}, off, {W}, s{sT0} offset:{128*i} sc1')
            else: a(f'buffer_store_dword v{vM2}, off, {W}, s{sT0} sc1')
            a(f's_mov_b64 exec, -1\n{lbl}:')
        a(f'RQ{Z}_LOOP:')
        slot(a, sAC, 0, SH_A, sP1); slot(a, sOC, 0, SH_B2, sP0); slot(a, sB1A, 2, SH_B1, sP0); slot(a, sB2N, 1, SH_B2, sP0)
        if FRESH: a(f's_lshl_b32 s{sB1C}, s{sSTEP}, {SH_B1}\ns_add_u32 s{sB1C}, s{sB1C}, {B1F_BASE}\n' + kvm_half(sB1C) + f's_mov_b32 s{sB1C}, s{sT0}')
        else: slot(a, sB1C, 0, SH_B1, sP0)
        a(f's_add_u32 s{sO6}, s{sOC}, 4096')
        a(f's_cmp_eq_u32 s{sPW}, 3\ns_cbranch_scc1 RQ{Z}_VR')
        a(f's_cmp_ge_u32 s{sSTEP}, {NSTEP-1}\ns_cbranch_scc1 RQ_LAST')
        a(f's_cmp_eq_u32 s{sPW}, 0\ns_cbranch_scc1 RQ{Z}_AT')
        a('s_barrier\ns_barrier\ns_barrier')
        if opt.get('arm_at', 0) == 2 and not FRESH: a(f'buffer_store_dwordx2 {v(vS2,2)}, v{vB1W}, {W}, s{sB1A} offen sc1')
        a(f's_branch RQ{Z}_OG')
        a(f'RQ{Z}_VR:\ns_waitcnt vmcnt(0)\ns_barrier\ns_barrier')
        for q in range(4): a(f'ds_read_b128 {v(VR+4*q,4)}, v{vTR} offset:{LDS_P + 8192 + q*1024}')
        for q in range(4):
            a(f's_waitcnt lgkmcnt({3-q})')
            for t in range(2):
                d = v(VD+4*t,4)
                a(f'v_mfma_f32_16x16x32_bf16 {d}, {v(SV+((q>>1)*2+t)*4,4)}, {v(VR+4*q,4)}, {"0" if q == 0 else d}')
        a('s_nop 7')
        for i in range(4): a(f'v_cvt_pk_bf16_f32 v{VM+i}, v{VD+2*i}, v{VD+2*i+1}')
        VCP = kvm_half(sKV) + f's_mov_b32 exec_lo, 0\nbuffer_store_dwordx4 {v(VM,4)}, v{vKV}, {W}, s{sT0} offen sc1\ns_mov_b32 exec_lo, -1\ns_add_u32 s{sKV}, s{sKV}, {32*UNIT}'
        a(f's_cmp_ge_u32 s{sSTEP}, {NSTEP-1}\ns_cbranch_scc1 RQ{Z}_FINAL')
        a(f'ds_write_b128 v{vLR}, {v(VM,4)} offset:{LDS_V - 2048}\ns_waitcnt lgkmcnt(0)\ns_barrier')
        J2 = opt.get('junk', 1) == 2
        if J2: a('s_barrier\ns_barrier')
        if not opt.get('nocopy'): a(VCP)
        if not J2: a('s_barrier\ns_barrier')
        kvm_signal(f'RQ{Z}_SG', False)
        a(f's_branch RQ{Z}_E')
        a(f'RQ{Z}_AT:\ns_barrier')
        ts(0)
        nops('a_nops', 48)
        ldt = lambda k: a(f'buffer_load_dwordx4 {v(T+4*k,4)}, v{vTR}, {W}, s{sAC} offen offset:{k*1024} sc1')
        TD = opt.get('tdepth', 4)
        for i in range(TD - 1):
            for k in range(4): ldt(k)
            if i == opt.get('t1b', 1): a('s_barrier')
            else: nops('tgap', 12)
        a(f'RQ{Z}_TF:')
        for k in range(4): ldt(k)
        budget(a, EXIT); cnt(0)
        a(f's_waitcnt vmcnt({4*(TD-1)})')
        ts(1)
        a(f'v_max3_u32 v{vM}, v{T+3}, v{T+7}, v{T+11}\nv_max3_u32 v{vCH}, v{T}, v{T+1}, v{T+2}\nv_max_u32 v{vM}, v{vM}, v{T+15}')
        def smf(k, t):
            tk = v(T+4*k,4)
            if t == 0: a(f'v_mfma_f32_16x16x32_bf16 {v(S,4)}, {tk}, {tk}, {v(CM,4) if k == 0 else v(S,4)}')
            else:
                d = v(S+4*t,4)
                a(f'v_mfma_f32_16x16x32_bf16 {d}, {v(KX+((t-1)*4+k)*4,4)}, {tk}, {"0" if k == 0 else d}')
        smf(0,0)
        a(f'v_cmp_eq_u32 vcc, -1, v{vM}\nv_max3_u32 v{vT}, v{T+4}, v{T+5}, v{T+6}')
        smf(0,1)
        a(f'v_max3_u32 v{vCH}, v{vCH}, v{T+8}, v{T+9}\nv_max3_u32 v{vT}, v{vT}, v{T+10}, v{T+12}')
        smf(0,2)
        a(f's_cbranch_vccnz RQ{Z}_TF')
        smf(1,0)
        a(f'v_max3_u32 v{vCH}, v{vCH}, v{T+13}, v{T+14}\nv_max_u32 v{vCH}, v{vCH}, v{vT}')
        smf(1,1)
        a(f'v_cmp_eq_u32 vcc, -1, v{vCH}')
        smf(1,2); smf(2,0)
        a(f's_cbranch_vccnz RQ{Z}_TF')
        smf(2,1)
        a('s_barrier')
        smf(2,2)
        a(f'ds_read_b128 {v(VM,4)}, v{vLR} offset:{LDS_V}')
        smf(3,0); smf(3,1); smf(3,2)
        a('s_nop 1')
        ts(2)
        a(f'v_max3_f32 v{vM}, v{S}, v{S+1}, v{S+2}')
        a('s_nop 1')
        a(f'v_max3_f32 v{vM2}, v{S+3}, v{S+4}, v{S+5}')
        a(f'v_max3_f32 v{vM}, v{vM}, v{S+6}, v{S+7}')
        a('s_nop 0')
        a(f'v_max3_f32 v{vM2}, v{vM2}, v{S+8}, v{S+9}')
        a(f'v_max3_f32 v{vM}, v{vM}, v{S+10}, v{S+11}')
        a(f'v_max_f32 v{vT}, v{vM}, v{vM2}')
        a(f'v_max_f32 v{vM}, v{vM}, v{vM2}')
        a(f"""s_nop 1
        v_permlane32_swap_b32 v{vM}, v{vT}
        v_max_f32 v{vM2}, v{vM}, v{vT}
        v_max_f32 v{vM}, v{vM}, v{vT}
        s_waitcnt lgkmcnt(0)
        s_nop 0
        v_permlane16_swap_b32 v{vM}, v{vM2}
        v_max_f32 v{vM}, v{vM}, v{vM2}
        v_mul_f32 v{vM2}, s{sSC+1}, v{vM}""")
        ts(4)
        for r in range(0, 12, 2): a(f'v_pk_fma_f32 {v(S+r,2)}, {v(S+r,2)}, s[{sSC}:{sSC+1}], {v(vM2,2)} op_sel_hi:[1,0,0]')
        ex = lambda r: a(f'v_exp_f32 v{S+r}, v{S+r}')
        for r in range(6): ex(r)
        a(f'v_cvt_pk_bf16_f32 v{PM}, v{S}, v{S+1}\nv_cvt_pk_bf16_f32 v{PM+1}, v{S+2}, v{S+3}')
        ex(6); ex(7)
        a(f'v_mfma_f32_16x16x16_bf16 {v(LD,4)}, {v(ONES,2)}, {v(PM,2)}, 0')
        ex(8)
        a(f'v_mfma_f32_16x16x16_bf16 {v(OD,4)}, {v(VM,2)}, {v(PM,2)}, 0')
        ex(9)
        a(f'v_mfma_f32_16x16x16_bf16 {v(OD+4,4)}, {v(VM+2,2)}, {v(PM,2)}, 0')
        ex(10); ex(11)
        for r in range(4): a(f'v_cvt_pk_bf16_f32 v{PX+r}, v{S+4+2*r}, v{S+5+2*r}')
        ts(5)
        a('s_nop 1')
        a(f'v_mfma_f32_16x16x32_bf16 {v(LD,4)}, {v(ONES,4)}, {v(PX,4)}, {v(LD,4)}')
        a(f'v_mfma_f32_16x16x32_bf16 {v(OD,4)}, {v(VX,4)}, {v(PX,4)}, {v(OD,4)}')
        a(f'v_mfma_f32_16x16x32_bf16 {v(OD+4,4)}, {v(VX+4,4)}, {v(PX,4)}, {v(OD+4,4)}')
        a(f's_mov_b32 exec_lo, 0x00ff00ff\ns_mov_b32 exec_hi, 0x00ff00ff')
        a(f'v_rcp_f32 v{LD}, v{LD}\ns_nop 1')
        sc = lambda r: a(f'v_pk_mul_f32 {v(OD+r,2)}, {v(OD+r,2)}, {v(LD,2)} op_sel_hi:[1,0]')
        sc(0); sc(2); a('s_nop 0'); sc(4); sc(6)
        for r in range(4): a(f'v_cvt_pk_bf16_f32 v{OP+r}, v{OD+r}, v{OD+4+r}')
        for r in range(4): a(f'v_min_u32 v{OP+r}, -2, v{OP+r}')
        a(f'buffer_store_dwordx4 {v(OP,4)}, v{vOW}, {W}, s{sOC} offen{IN}\ns_mov_b64 exec, -1')
        ts(6)
        a('s_barrier\ns_barrier')
        sleep('wc_delay', 0)
        if not opt.get('nopf'): prefetch()
        a(f's_branch RQ{Z}_E')
        a(f'RQ{Z}_OG:\ns_barrier')
        ts(7)
        nops('o_nops', 16)
        a(f'RQ{Z}_RETRY:')
        def ldg(k):
            for j in (2*k, 2*k+1): a(f'buffer_load_dwordx4 {v(OG+4*j,4)}, v{vGR}, {W}, s{sOC if j < 4 else sO6} offen offset:{(j&3)*1024} sc1')
        for k in range(4):
            ldg(k)
            if k == 0:
                for r in range(8): a(f'v_mov_b32 v{ACC+r}, 0')
                nops(opt.get('ogap', 12) - 8)
            elif k < 3: nops('ogap', 12)
        sms = lambda t, j: f'v_smfmac_f32_16x16x64_bf16 {v(ACC+4*t,4)}, {v(OG+4*j,4)}, {v(wo(t,j),8)}, v{vIDX}'
        def o_fail(i): cnt(5+i); budget(a, EXIT)
        o_rest = gather_fsm(a, f'ROG{Z}', 4, ldg, lambda k: OG+8*k, lambda k, f: [sms(0,2*k), sms(0,2*k+1), sms(1,2*k), sms(1,2*k+1)],
                            vCH, vT, f'ROG{Z}_DONE', o_fail, first_ts=lambda: ts(8), last_ts=lambda: ts(9), mult=2, vQ=vM)
        a(f'ROG{Z}_DONE:\nv_max_u32 v{vCH}, v{vCH}, v{vT}\nv_cmp_eq_u32 vcc, -1, v{vCH}')
        def hadd(t):
            b = ACC + 4*t
            a(f'v_permlane32_swap_b32 v{b}, v{b+2}\nv_permlane32_swap_b32 v{b+1}, v{b+3}\nv_pk_add_f32 {v(b,2)}, {v(b,2)}, {v(b+2,2)}')
        hadd(0)
        a(f's_cbranch_vccnz RQ{Z}_RO\ns_nop 1')
        hadd(1)
        for r in range(2): a(f'v_cvt_pk_bf16_f32 v{ACC+2+r}, v{ACC+r}, v{ACC+4+r}')
        for r in range(2): a(f'v_min_u32 v{ACC+2+r}, -2, v{ACC+2+r}')
        a(f'buffer_store_dwordx2 {v(ACC+2,2)}, v{vB1W}, {W}, s{sB1C} offen sc1')
        ts(11)
        ARM = f'buffer_store_dwordx2 {v(vS2,2)}, v{vB1W}, {W}, s{sB1A} offen sc1'
        a(f'ds_write_b64 v{vLW}, {v(ACC+2,2)} offset:{LDS_W}')
        if opt.get('arm_at', 0) == 0 and not FRESH: a(ARM)
        a('s_waitcnt lgkmcnt(0)\ns_barrier')
        a(f'ds_read_b128 {v(BD,4)}, v{vLR} offset:{LDS_W}\ns_waitcnt lgkmcnt(0)')
        a(f'v_mfma_f32_16x16x32_bf16 {v(RDD,4)}, {v(SEL,4)}, {v(BD,4)}, 0')
        sleep('b1_delay', 3)
        nops('b1_nops')
        def ldb():
            for j in range(2): a(f'buffer_load_dwordx4 {v(BD+4*j,4)}, v{vB1R}, {W}, s{sB1C} offen offset:{j*1024} sc1')
        BDp = opt.get('bdepth', 6)
        ts(12)
        for i in range(BDp - 1):
            ldb(); nops('bgap', 14)
        a(f'RQ{Z}_B1F:')
        ldb(); budget(a, EXIT); cnt(10)
        a(f's_waitcnt vmcnt({2*(BDp-1)})')
        ts(13)
        a(f'v_max3_u32 v{vCH}, v{BD}, v{BD+1}, v{BD+2}\nv_max3_u32 v{vCH}, v{vCH}, v{BD+3}, v{BD+4}')
        a(f'v_mfma_f32_16x16x32_bf16 {v(BO,4)}, {v(SEL,4)}, {v(BD,4)}, {v(RDD,4)}')
        a(f'v_max3_u32 v{vT}, v{BD+5}, v{BD+6}, v{BD+7}')
        a(f'v_mfma_f32_16x16x32_bf16 {v(BO,4)}, {v(SEL,4)}, {v(BD+4,4)}, {v(BO,4)}')
        a(f'v_max_u32 v{vCH}, v{vCH}, v{vT}\nv_cmp_eq_u32 vcc, -1, v{vCH}\ns_nop 4\ns_cbranch_vccnz RQ{Z}_B1F')
        a(f'v_cvt_pk_bf16_f32 v{vT}, v{BO}, v{BO+1}\nv_min_u32 v{vT}, -2, v{vT}')
        a(f'buffer_store_dword v{vT}, v{vB2W}, {W}, s{sB2N} offen{IN}')
        ts(14)
        a(f'RQ{Z}_E:\ns_add_u32 s{sSTEP}, s{sSTEP}, 1')
        a('s_barrier')
        tl_dump(f'RQ{Z}_TL', vT)
        a(f's_branch RQ{Z}_LOOP')
        a(f'RQ{Z}_RO:'); budget(a, EXIT)
        a(f's_waitcnt vmcnt(0)\ns_nop 4\ns_branch RQ{Z}_RETRY')
        o_rest()
        a(f'RQ{Z}_FINAL:')
        a(VCP)
        a('s_waitcnt vmcnt(0)\ns_barrier')
        kvm_signal(f'RQ{Z}_SGF', True)
        a('s_waitcnt vmcnt(0)\ns_branch RQ_END')
    if DUAL:
        a(f's_cmp_lg_u32 s{sMODE}, 0\ns_cbranch_scc1 RQs_LOOP')
        q_loop('f', ''); q_loop('s', ' sc1')
    else: q_loop('', LIN)
    a('RQ_LAST:\ns_barrier\ns_barrier\ns_barrier')
    a('RQ_END:')
    if TL: dump(2*NST, 12, 1, 16, vT)
    a(f's_branch {NEXT}')
```

```python
from asmlib import *
from layout import *
from gemm import G
from rec import *

POL_BASE = G_BASE + 32768

def common_entry(a, nwg, exit_lbl, split=True):
    a(f'''s_cmp_ge_u32 s2, {nwg}
    s_cbranch_scc1 {exit_lbl}
    s_load_dwordx4 s[4:7], s[0:1], 96
    s_waitcnt lgkmcnt(0)''')
    srd(a, DBG, 4, 256); srd(a, WS, 6, WS_SIZE)
    a(f's_mov_b32 s{sWSB}, s6\ns_mov_b32 s{sWSB+1}, s7')
    if split:
        a(f'v_lshrrev_b32 v1, 6, v0\nv_and_b32 v0, 63, v0\ns_nop 0\nv_readfirstlane_b32 s{G.sWv}, v1\ns_nop 3')

def ticket(a, exit_lbl):
    D = f's[{DBG}:{DBG+3}]'
    a(f'''s_getreg_b32 s3, hwreg(HW_REG_XCC_ID)
    s_and_b32 s3, s3, 7
    s_mov_b32 s{sBUD}, 4000000
    v_cmp_eq_u32 vcc, 0, v0
    s_and_saveexec_b64 s[4:5], vcc
    s_cbranch_execz TK_W
    v_mov_b32 v1, 1
    v_mov_b32 v2, 1
    s_and_b32 s{sT0}, s3, 3
    s_lshl_b32 s{sT0}, s{sT0}, 2
    s_and_b32 s{sT1}, s3, 4
    s_lshl_b32 s{sT1}, s{sT1}, 5
    s_add_u32 s{sT0}, s{sT0}, s{sT1}
    buffer_atomic_add v1, off, {D}, s{sT0} sc0 sc1
    s_waitcnt vmcnt(0)
    v_readfirstlane_b32 s{sT1}, v1
    s_lshl_b32 s{sT0}, s3, 5
    s_nop 2
    s_add_u32 s{sRHO}, s{sT0}, s{sT1}
    s_cmp_lt_u32 s{sT1}, 32
    s_cbranch_scc1 TK_HAVE
    buffer_atomic_add v2, off, {D}, 0 offset:68 sc1
    v_mov_b32 v1, 1
    buffer_atomic_add v1, off, {D}, 0 offset:36 sc0 sc1
TK_ALL:
    buffer_load_dwordx4 v[4:7], off, {D}, 0 sc1
    buffer_load_dwordx4 v[8:11], off, {D}, 0 offset:128 sc1
    s_sub_u32 s{sBUD}, s{sBUD}, 1
    s_cbranch_scc1 {exit_lbl}
    s_waitcnt vmcnt(0)
    v_add3_u32 v3, v4, v5, v6
    v_add3_u32 v3, v3, v7, v8
    v_add3_u32 v3, v3, v9, v10
    v_add_u32 v3, v3, v11
    v_cmp_gt_u32 vcc, 0x100, v3
    s_cbranch_vccnz TK_ALL
    v_readfirstlane_b32 s{sT1}, v1''')
    for x in range(8):
        a(f'''v_readfirstlane_b32 s{sT0}, v{4+x}
        s_nop 3
        s_min_u32 s{sT0}, s{sT0}, 32
        s_add_u32 s{sRHO}, s{sT0}, s{sT1}
        s_sub_u32 s{sT1}, s{sRHO}, 32
        s_add_u32 s{sRHO}, s{sRHO}, {32*x}
        s_cmp_lt_i32 s{sT1}, 0
        s_cbranch_scc1 TK_HAVE''')
    a(f'''TK_HAVE:
    v_mov_b32 v1, s{sRHO}
    v_mov_b32 v2, 0
    s_waitcnt vmcnt(0)
    ds_write_b32 v2, v1
TK_W:
    s_mov_b64 exec, s[4:5]
    s_waitcnt lgkmcnt(0)
    s_barrier
    v_mov_b32 v2, 0
    ds_read_b32 v1, v2
    s_waitcnt lgkmcnt(0)
    v_readfirstlane_b32 s{sRHO}, v1
    s_barrier
    s_and_b32 s{sRHO}, s{sRHO}, 255''')

def probe(a, tag, reps=3):
    Wd = f's[{WS}:{WS+3}]'
    a(f's_getreg_b32 s3, hwreg(HW_REG_XCC_ID)\ns_and_b32 s3, s3, 4\nv_mov_b32 v1, 0\ns_mov_b64 exec, 1\ns_mov_b32 s90, 0\ns_mov_b32 s88, {MSG0}\ns_mov_b32 s89, {MSG0 + 8192}')
    for rep in range(2*reps + 1):
        f, g = (88, 89) if rep & 1 else (89, 88)
        a(f"""buffer_store_dword v1, off, {Wd}, s{f} offset:{rep*256} sc1
        buffer_store_dword v1, off, {Wd}, s{g} offset:{rep*256} sc1
        s_waitcnt vmcnt(1)
        s_memtime s[92:93]
        s_waitcnt vmcnt(0)
        s_memtime s[94:95]
        s_waitcnt lgkmcnt(0)""")
        if rep:
            a(f's_sub_u32 s92, s94, s92\ns_min_u32 s92, s92, 300\n' + ('s_add_u32' if rep & 1 else 's_sub_u32') + ' s90, s90, s92')
    a(f"""s_cmp_lt_i32 s90, 0
    s_cselect_b32 s89, 4, 0
    s_xor_b32 s89, s89, s3
    s_lshl_b32 s89, s89, 11
    s_add_u32 s89, s89, {MSG0 + 1}
    v_mov_b32 v1, s89
    buffer_store_dword v1, off, s[{DBG}:{DBG+3}], 0 offset:72 sc1
    s_mov_b64 exec, -1""")

def clear_counters(a, tag):
    Wd = f's[{WS}:{WS+3}]'
    a('v_lshlrev_b32 v1, 4, v0')
    for r in range(4): a(f'v_mov_b32 v{8+r}, 0')
    n = -(-C_END * 128 // 8192)
    for i in range(n): a(f's_mov_b32 s89, {CNT_BASE + i*8192}\nbuffer_store_dwordx4 v[8:11], v1, {Wd}, s89 offen sc1')
    a(f"""s_waitcnt vmcnt(0)
    s_barrier
    v_cmp_eq_u32 vcc, 64, v0
    s_and_saveexec_b64 s[4:5], vcc
    s_cbranch_execz {tag}_X
    v_mov_b32 v1, 1
    buffer_store_dword v1, off, s[{DBG}:{DBG+3}], 0 offset:76 sc1
{tag}_X:
    s_mov_b64 exec, s[4:5]""")
```

```python
import sys, json
from asmlib import *
from layout import *
from gemm import *
from gemm1 import *
from misc import *
from roles import *
import rec
NAME = 'gated_mix__memory_aug_recurrent_mem_tr__spectral_gfnet__prompt'
HEAD = open(f'cdna_kernels/{NAME}.s.ref').read().split('; Override launch')[0]

T_G1W, T_G1N, T_PREP, T_WT, T_FFT, T_QA, T_G2, T_RED, T_G1S, T_G2N, T_G2S = range(11)
CW, CN, CS = Cfg(256, 256, 2, 4, 2), Cfg(256, 128, 4, 2, 3), Cfg(128, 128, 4, 2, 4)
sGRP, sIDX, sRDY = 52, 53, 54
sE = 20
sTB = 28
sGB = 30
vNX = 3
LDS_BC = 147456

def dep(idx, target, gs=0): return idx | (gs << 10) | (target << 20)

DEFAULT_ORDER = ('s0 n1 n2 prep k3 k4 q0 q1 F wt q2 k5 g0 g1 fft q3 k6 q4 g2 k7 z0 z1 z2 z3 z4 z5 z6 z7 g3 q5 g4 q6 r0 r1 r2 q7 g5 r3 r4 g6 r5 r6 g7 r7')
def task_list(opt):
    L = []
    def add(ty, p1=0, p2=0, p3=0, deps=(), sig=0, w6=0, w7=0):
        d = list(deps) + [0] * (4 - len(deps))
        L.append([ty | p1 << 8 | p2 << 16 | p3 << 24] + d + [sig, w6, w7])
    def kv_wide(rb):
        for ty in (0, 1):
            for c in range(4): add(T_G1W, rb, c, ty, sig=dep(C_KV + rb, 4, 8))
    def q_wide(rb):
        lead = 8*rb + 7 - opt.get('qlead', 14)
        d = [dep(C_KV + rb, KV_TARGET, 8), dep(C_PREP, 128)] + ([dep(C_KVM + lead, 32, 64)] if lead >= 0 else [])
        for c in range(4): add(T_QA, rb, c, 2, deps=d, sig=dep(C_Q + rb, 1, 8))
    def kv_small(rb):
        for h in range(2):
            for ty in (0, 1):
                for c in range(8): add(T_G1S, 2*rb + h, c, ty, sig=dep(C_KV + rb, 1, 8))
    shapes = opt.get('shapes', 'W1 W1 W1 W1 W1 W2 N2 N4').split()
    slot0 = {}; n = 0
    for rb in range(8):
        slot0[rb] = n; n += 8 * (1 + 4*int(shapes[rb][1]))
    assert n * PT <= 64*MB
    NPs = lambda rb: 1 + 4*int(shapes[rb][1])
    def zpart(rb):
        NP = NPs(rb)
        add(T_G2, rb, 1 << 4, 0, deps=[dep(C_FFT, 64), dep(C_PREP, 128)], sig=dep(C_G2 + rb, 4, 8), w6=NP << 8 | (2*NP) << 16, w7=slot0[rb])
    def g2(rb):
        sh, sub = shapes[rb][0], int(shapes[rb][1]); NP = NPs(rb); ns = 16 // sub
        d = [dep(C_Q + rb, 4, 8)]
        for j in range(sub):
            if sh == 'W':
                for ct in range(4): add(T_G2, rb, ct, j*ns, deps=d, sig=dep(C_G2 + 8*ct + rb, 4), w6=ns | NP << 8 | sub << 16, w7=slot0[rb] + 2*ct*NP + 1 + j)
            else:
                for h in range(2 if sh == 'S' else 1):
                    for c in range(8):
                        add(T_G2S if sh == 'S' else T_G2N, 2*rb + h if sh == 'S' else rb, c, j*ns, deps=d, sig=dep(C_G2 + 8*(c>>1) + rb, 1 if sh == 'S' else 2),
                            w6=ns | NP << 8 | sub << 16, w7=slot0[rb] + c*NP + 1 + j)
    def red(rb):
        NP = NPs(rb); nt = opt.get('rednt', [2, 2, 2, 2, 2, 4, 8, 8])[rb]
        for c in range(2):
            for t in range(nt): add(T_RED, rb, c, t * (64 // nt), deps=[dep(C_G2 + rb, 4*NP, 8)], w6=8 // nt | NP << 8 | (2*NP) << 16, w7=slot0[rb] + c*NP)
    def kv_narrow(rb):
        for ty in (0, 1):
            for c in range(8): add(T_G1N, rb, c, ty, sig=dep(C_KV + rb, 2, 8))
    def prep():
        for i in range(32): add(T_PREP, i, sig=dep(C_PREP, 1))
    def ftiles():
        for rb in range(8): add(T_G1W, rb, 0, 3, deps=[dep(C_PREP, 128)], sig=dep(C_F, 1))
    def wt():
        for i in range(16): add(T_WT, i, sig=dep(C_WT, 1))
    def fft():
        for i in range(16): add(T_FFT, i, deps=[dep(C_F, 32), dep(C_WT, 64)], sig=dep(C_FFT, 1))
    fn = dict(s=kv_small, n=kv_narrow, k=kv_wide, q=q_wide, g=g2, r=red, z=zpart)
    for tok in opt.get('order', DEFAULT_ORDER).split():
        if tok in ('prep', 'F', 'wt', 'fft'): dict(prep=prep, F=ftiles, wt=wt, fft=fft)[tok]()
        else: fn[tok[0]](int(tok[1]))
    return L

def build(opt, path):
    a = Asm()
    D = f's[{DBG}:{DBG+3}]'
    L = task_list(opt)
    GT = opt.get('gtrace', False); G.TRACE = GT
    common_entry(a, 256, 'K_EXIT', split=False)
    a('s_cmp_lg_u32 s2, 0\ns_cbranch_scc1 K_NP\nv_readfirstlane_b32 s3, v0\ns_nop 3\ns_cmp_lg_u32 s3, 0\ns_cbranch_scc1 K_NP')
    probe(a, 'PB')
    a('K_NP:\ns_cmp_lg_u32 s2, 8\ns_cbranch_scc1 K_NC')
    clear_counters(a, 'CC')
    a('K_NC:')
    ticket(a, 'K_EXIT')
    a(f's_cmp_lt_u32 s{sRHO}, 128\ns_cbranch_scc0 G_ENTRY')
    o = dict(opt); o['exit'] = 'K_EXIT'; o['mega'] = True; o['kvflav'] = ' sc1'; o['next'] = 'R_JOIN' if opt.get('join', True) else 'K_EXIT'
    rec.gen_rec(a, o)
    a('K_EXIT:\ns_endpgm')
    a(f'''R_JOIN:
    s_lshl_b32 s4, s{sW}, 6
    v_add_u32 v0, s4, v0
G_ENTRY:
    v_lshrrev_b32 v1, 6, v0
    v_and_b32 v0, 63, v0
    s_bfe_u32 s{sGRP}, s{sRHO}, 0x20005
    v_readfirstlane_b32 s{G.sWv}, v1
    s_and_b32 s{sIDX}, s{sRHO}, 31
    s_mov_b32 s{sRDY}, 0
    s_mov_b32 s{sGB}, 3000000
    s_mov_b32 s55, s{sRHO}
    s_getpc_b64 s[{sTB}:{sTB+1}]
G_PC:
    s_add_u32 s{sTB}, s{sTB}, G_TABLE-G_PC
    s_addc_u32 s{sTB+1}, s{sTB+1}, 0
    s_cmp_lt_u32 s55, 128
    s_cbranch_scc0 G_E2
    s_mov_b32 s{sE+5}, 0
    s_mov_b32 s{sIDX}, 1023
    s_branch G_DONE
G_E2:''')
    a(f'''G_LOOP:
    s_cmp_ge_u32 s{sIDX}, {len(L)}
    s_cbranch_scc1 G_EXIT
    s_lshl_b32 s4, s{sIDX}, 5
    s_load_dwordx8 s[{sE}:{sE+7}], s[{sTB}:{sTB+1}], s4''')
    if GT: a('s_memrealtime s[96:97]')
    a(f'''s_cmp_lg_u32 s{G.sWv}, 0
    s_cbranch_scc1 G_GO
    s_waitcnt lgkmcnt(0)
    s_cmp_eq_u32 s{sE+1}, 0
    s_cbranch_scc1 G_GO
    v_mov_b32 v1, 0''')
    for i in range(4): a(f'v_writelane_b32 v1, s{sE+1+i}, {i}')
    a(f'''v_bfe_u32 v2, v1, 10, 7
    v_and_b32 v3, 0x3ff, v1
    v_mad_u32_u24 v2, v2, s{sGRP}, v3
    v_lshlrev_b32 v2, 7, v2
    v_lshrrev_b32 v1, 20, v1
    s_mov_b32 s4, {CNT_BASE}
    s_mov_b64 exec, 15
G_POLL:
    buffer_load_dword v3, v2, {W}, s4 offen sc1
    s_sub_u32 s{sGB}, s{sGB}, 1
    s_cbranch_scc1 G_EXIT
    s_waitcnt vmcnt(0)
    v_cmp_lt_u32 vcc, v3, v1
    s_cbranch_vccz G_POLLED
    s_sleep {opt.get('gsleep', 4)}
    s_branch G_POLL
G_POLLED:
    s_mov_b64 exec, -1
G_GO:
    s_waitcnt lgkmcnt(0)
    s_barrier''')
    if GT: a('s_memrealtime s[98:99]')
    a(f'''s_and_b32 s4, s{sE}, 255
    s_bfe_u32 s{sRB}, s{sE}, 0x80008
    s_bfe_u32 s{sCB}, s{sE}, 0x80010
    s_lshr_b32 s{sTY}, s{sE}, 24''')
    names = ['G1W', 'G1N', 'PREP', 'WT', 'FFT', 'QA', 'G2', 'RED', 'G1S', 'G2N', 'G2S']
    for i, n in enumerate(names): a(f's_cmp_eq_u32 s4, {i}\ns_cbranch_scc1 H_{n}')
    a(f'''G_DONE:
    s_cmp_lg_u32 s{G.sWv}, 0
    s_cbranch_scc1 G_D1
    v_mov_b32 v{vNX}, 1
    s_lshl_b32 s4, s{sGRP}, 2
    s_mov_b64 exec, 1
    buffer_atomic_add v{vNX}, off, {D}, s4 offset:160 sc0 sc1
    s_mov_b64 exec, -1
G_D1:
    s_waitcnt vmcnt(0) lgkmcnt(0)
    s_barrier
    s_cmp_lg_u32 s{G.sWv}, 0
    s_cbranch_scc1 G_NEXT
    s_cmp_lg_u32 s{sRDY}, 0
    s_cbranch_scc1 G_RDY
G_RW:
    buffer_load_dwordx2 v[4:5], off, {D}, 0 offset:72 sc1
    s_sub_u32 s{sGB}, s{sGB}, 1
    s_cbranch_scc1 G_EXIT
    s_waitcnt vmcnt(0)
    v_min_u32 v1, v4, v5
    v_cmp_eq_u32 vcc, 0, v1
    s_cbranch_vccnz G_RW
    v_mov_b32 v2, {LDS_BC}
    ds_write_b32 v2, v4 offset:4
    s_mov_b32 s{sRDY}, 1
G_RDY:
    s_mov_b64 exec, 1
    v_mov_b32 v2, {LDS_BC}
    v_add_u32 v{vNX}, 32, v{vNX}
    ds_write_b32 v2, v{vNX}
    s_cmp_eq_u32 s{sE+5}, 0
    s_cbranch_scc1 G_NOSIG
    s_bfe_u32 s4, s{sE+5}, 0x7000a
    s_mul_i32 s4, s4, s{sGRP}
    s_and_b32 s5, s{sE+5}, 0x3ff
    s_add_u32 s4, s4, s5
    s_lshl_b32 s4, s4, 7
    s_add_u32 s4, s4, {CNT_BASE}
    s_lshr_b32 s5, s{sE+5}, 20
    v_mov_b32 v1, s5
    buffer_atomic_add v1, off, {W}, s4 sc1
G_NOSIG:''')
    if GT:
        a(f'''s_memrealtime s[100:101]
        s_lshl_b32 s4, s{sGRP}, 10
        s_add_u32 s4, s4, s{sIDX}
        s_lshl_b32 s4, s4, 5
        s_add_u32 s4, s4, {STAMP_BASE + 768*1024}
        s_waitcnt lgkmcnt(0)
        v_mov_b32 v4, s96
        v_mov_b32 v5, s98
        v_mov_b32 v6, s100
        v_mov_b32 v7, s55
        buffer_store_dwordx4 v[4:7], off, {W}, s4
        s_sub_u32 s38, s42, s38
        v_mov_b32 v8, s32
        v_mov_b32 v9, s34
        v_mov_b32 v10, s38
        v_mov_b32 v11, 0
        buffer_store_dwordx4 v[8:11], off, {W}, s4 offset:16''')
    a(f'''s_mov_b64 exec, -1
    s_waitcnt lgkmcnt(0)
G_NEXT:
    s_barrier
    v_mov_b32 v2, {LDS_BC}
    ds_read_b64 v[2:3], v2
    s_waitcnt lgkmcnt(0)
    v_readfirstlane_b32 s{sIDX}, v2
    v_readfirstlane_b32 s{sP0}, v3
    s_nop 3
    s_branch G_LOOP
G_EXIT:
    s_endpgm''')
    SC = ' sc1'
    a(f'H_G1W:\ns_cmp_eq_u32 s{sTY}, 3\ns_cselect_b32 s4, 0, 2\ns_lshl_b32 s4, s{sGRP}, s4\ns_add_u32 s{sCB}, s{sCB}, s4')
    gen_gemm1(a, 'G1W', CW, 'G_DONE', stflav=SC, ldflav=SC)
    a(f'H_G1N:\ns_lshl_b32 s4, s{sGRP}, 3\ns_add_u32 s{sCB}, s{sCB}, s4')
    gen_gemm1(a, 'G1N', CN, 'G_DONE', stflav=SC, with_f=False)
    a(f'H_G1S:\ns_lshl_b32 s4, s{sGRP}, 3\ns_add_u32 s{sCB}, s{sCB}, s4')
    gen_gemm1(a, 'G1S', CS, 'G_DONE', stflav=SC, with_f=False, ldflav=opt.get('sflav', ''))
    a(f'H_PREP:\ns_lshl_b32 s{sTK}, s{sGRP}, 5\ns_add_u32 s{sTK}, s{sTK}, s{sRB}\ns_lshl_b32 s{sTK}, s{sTK}, 1\nH_PREP2:')
    gen_prep(a, 'P', stflav=SC)
    a(f's_add_u32 s{sTK}, s{sTK}, 1\ns_bitcmp1_b32 s{sTK}, 0\ns_cbranch_scc1 H_PREP2\ns_branch G_DONE')
    a(f'H_WT:\ns_lshl_b32 s{sTK}, s{sGRP}, 4\ns_add_u32 s{sTK}, s{sTK}, s{sRB}')
    gen_wt(a, 'PW', stflav=SC); a('s_branch G_DONE')
    a(f'H_FFT:\ns_lshl_b32 s{sTK}, s{sGRP}, 4\ns_add_u32 s{sTK}, s{sTK}, s{sRB}')
    gen_fft_tables(a); gen_fft(a, 'FF', ldflav=SC, stflav=SC); a('s_branch G_DONE')
    a(f'H_QA:\ns_lshl_b32 s4, s{sGRP}, 2\ns_add_u32 s{sCB}, s{sCB}, s4')
    gen_qattn(a, 'QA', 'G_DONE', 'G_EXIT', sGB, ldflav=SC, stflav=SC)
    def g2args():
        a(f'''s_and_b32 s{sNO}, s{sE+6}, 255
        s_bfe_u32 s{sNP}, s{sE+6}, 0x80008
        s_lshr_b32 s4, s{sE+6}, 16
        s_mul_i32 s{sSL}, s4, s{sGRP}
        s_add_u32 s{sSL}, s{sSL}, s{sE+7}
        s_lshl_b32 s{sSL}, s{sSL}, 16
        s_add_u32 s{sSL}, s{sSL}, {PART_BASE}
        s_lshl_b32 s{sK0}, s{sGRP}, 4
        s_add_u32 s{sK0}, s{sK0}, s{sTY}''')
    a('H_G2:'); g2args()
    a(f's_lshr_b32 s{sFL}, s{sCB}, 4\ns_cselect_b32 s{sCB}, s{sGRP}, s{sCB}')
    gen_gemm2(a, 'G2', CW, 'G_DONE', ldflav=SC)
    a('H_G2N:'); g2args(); gen_gemm2(a, 'G2N', CN, 'G_DONE', ldflav=SC, with_z=False)
    a('H_G2S:'); g2args(); gen_gemm2(a, 'G2S', CS, 'G_DONE', ldflav=SC, with_z=False)
    a('H_RED:'); g2args()
    a(f's_mov_b32 s{sK0}, s{sTY}\ns_lshl_b32 s4, s{sGRP}, 1\ns_add_u32 s{sCB}, s{sCB}, s4')
    gen_reduce(a, 'RD', 'G_DONE')
    txt = HEAD + f'; @launch grid=(256,1,1) block=(512,1,1) lds={LDS_BC+128}\n'
    txt += '.amdgcn_target "amdgcn-amd-amdhsa--gfx950"\n.text\n' + kernel_header(NAME + '_kernel') + a.text()
    txt += '.p2align 6\n.type G_TABLE,@object\nG_TABLE:\n' + ''.join('.long ' + ','.join(hex(x) for x in e) + '\n' for e in L)
    txt += '.section .rodata,"a"\n' + kernel_desc(NAME + '_kernel')
    open(path, 'w').write(txt)
    json.dump(L, open('tasks.json', 'w'))

if __name__ == '__main__':
    build(json.loads(sys.argv[1]), sys.argv[2])
```
